```python
import torch

def _softmax(x, axis=-1):
    return torch.softmax(x, dim=axis)
def _gelu(x):
    return torch.nn.functional.gelu(x, approximate="tanh")
def _silu(x):
    return torch.nn.functional.silu(x)
def _sigmoid(x):
    return torch.sigmoid(x)
def _layernorm(x, axis=-1, eps=1e-5):
    m = x.mean(dim=axis, keepdim=True)
    v = x.var(dim=axis, keepdim=True, unbiased=False)
    return (x - m) / torch.sqrt(v + eps)
def _scatter_add(tgt, idx, src, axis=0):
    return tgt.clone().index_add_(axis, idx, src)
def _segment_sum(src, seg, n):
    out = torch.zeros((n,) + src.shape[1:], dtype=src.dtype)
    return out.index_add_(0, seg, src)
def _pad(x, pw):
    flat = tuple(v for pair in reversed(pw) for v in pair)
    return torch.nn.functional.pad(x, flat)

kernel_name = 'recurrent_scan__grouped_kv_mqa__swiglu_ffn__prompt'

def setup_inputs():

    _w = (lambda a: (lambda t: t.to(torch.bfloat16) if t.is_floating_point() else t)(torch.as_tensor(a)))
    def _A_setup():
        B, S, D, H = 1, 2048, 512, 32
        Dh = D // H
        return {
            "x": _w((lambda *s: torch.randn(*s, dtype=torch.bfloat16) * 0.05)(B, S, D)),
            "wq": _w((lambda *s: torch.randn(*s, dtype=torch.bfloat16) * 0.05)(D, H * Dh)),
            "wk": _w((lambda *s: torch.randn(*s, dtype=torch.bfloat16) * 0.05)(D, Dh)),
            "wv": _w((lambda *s: torch.randn(*s, dtype=torch.bfloat16) * 0.05)(D, Dh)),
            "wo": _w((lambda *s: torch.randn(*s, dtype=torch.bfloat16) * 0.05)(H * Dh, D)),
        }
    _A_in = _A_setup()

    def _B_setup():
        B, S, D, F = 1, 2048, 512, 1792
        return {
            "x": _w((lambda *s: torch.randn(*s, dtype=torch.bfloat16) * 0.05)(B, S, D)),
            "w_gate": _w((lambda *s: torch.randn(*s, dtype=torch.bfloat16) * 0.05)(D, F)),
            "w_up": _w((lambda *s: torch.randn(*s, dtype=torch.bfloat16) * 0.05)(D, F)),
            "w_down": _w((lambda *s: torch.randn(*s, dtype=torch.bfloat16) * 0.05)(F, D)),
        }
    _B_in = _B_setup()

    return {
        "A_x": _A_in["x"],
        "A_wq": _A_in["wq"],
        "A_wk": _A_in["wk"],
        "A_wv": _A_in["wv"],
        "A_wo": _A_in["wo"],
        "B_x": _B_in["x"],
        "B_w_gate": _B_in["w_gate"],
        "B_w_up": _B_in["w_up"],
        "B_w_down": _B_in["w_down"],
    }

def reference(A_x, A_wq, A_wk, A_wv, A_wo, B_x, B_w_gate, B_w_up, B_w_down):
    def _A_ref(x, wq, wk, wv, wo):
        B, S, D = x.shape
        H = 32
        Dh = D // H
        q = (lambda x, *d: x.permute(*d))((x @ wq).reshape(B, S, H, Dh), 0, 2, 1, 3)
        k = x @ wk
        v = x @ wv
        scores = torch.einsum("bhqd,bkd->bhqk", q, k) * (Dh ** -0.5)
        p = _softmax(scores, axis=-1)
        o = torch.einsum("bhqk,bkd->bhqd", p, v)
        return (lambda x, *d: x.permute(*d))(o, 0, 2, 1, 3).reshape(B, S, H * Dh) @ wo

    def _B_ref(x, w_gate, w_up, w_down):
        g = _silu(x @ w_gate)
        u = x @ w_up
        return (g * u) @ w_down

    x = A_x
    xn = _layernorm(x, axis=-1)
    s = _A_ref(xn, A_wq, A_wk, A_wv, A_wo)
    g = _silu(_B_ref(xn, B_w_gate, B_w_up, B_w_down))
    return x + s * g
```

```python
class Asm:
    def __init__(self):
        self.out = []
        self.nlab = 0
    def __call__(self, *lines):
        for s in lines:
            for t in s.split("\n"):
                self.out.append("    " + t.strip() if t.strip() else "")
    def label(self, name):
        self.out.append(name + ":")
    def newlabel(self, stem):
        self.nlab += 1
        return f"L_{stem}_{self.nlab}"
    def raw(self, s):
        self.out.append(s)
    def text(self):
        return "\n".join(self.out) + "\n"

def v(i, n=1):
    return f"v{i}" if n == 1 else f"v[{i}:{i+n-1}]"
def a(i, n=1):
    return f"a{i}" if n == 1 else f"a[{i}:{i+n-1}]"
def s(i, n=1):
    return f"s{i}" if n == 1 else f"s[{i}:{i+n-1}]"

def srd(A, d, base, nbytes):
    A(f"s_mov_b32 s{d}, s{base}", f"s_mov_b32 s{d+1}, s{base+1}",
      f"s_mov_b32 s{d+2}, {nbytes:#x}", f"s_mov_b32 s{d+3}, 0x00020000")

def dpp_reduce(A, op, r, t, steps):
    for st in steps:
        A("s_nop 1", f"{op}_dpp {v(r)}, {v(r)}, {v(r)} {st} row_mask:0xf bank_mask:0xf")

def swap_reduce(A, op, r, t, which):
    A(f"v_mov_b32 {v(t)}, {v(r)}", "s_nop 1",
      f"v_permlane{which}_swap_b32 {v(t)}, {v(r)}", "s_nop 1",
      f"{op} {v(r)}, {v(r)}, {v(t)}")

def kernel_desc(name, vgpr, sgpr, accum):
    return f""".p2align 6
.amdhsa_kernel {name}
  .amdhsa_next_free_vgpr {vgpr}
  .amdhsa_next_free_sgpr {sgpr}
  .amdhsa_accum_offset {accum}
  .amdhsa_group_segment_fixed_size 0
  .amdhsa_kernarg_size 96
  .amdhsa_user_sgpr_count 2
  .amdhsa_user_sgpr_kernarg_segment_ptr 1
  .amdhsa_system_sgpr_workgroup_id_x 1
  .amdhsa_float_denorm_mode_32 3
.end_amdhsa_kernel
"""

import os
DIAG = int(os.environ.get("DIAG", "0"))
class Stamps:
    def __init__(self, A, base, kid):
        self.A, self.base, self.n, self.kid = A, base, 0, kid
    def stamp(self, real=False):
        if not DIAG: return
        r = self.base + 2*self.n
        self.A("s_waitcnt lgkmcnt(0)" if DIAG > 1 else "s_nop 0")
        self.A(f"{'s_memrealtime' if real else 's_memtime'} s[{r}:{r+1}]", "s_waitcnt lgkmcnt(0)")
        self.n += 1
    def flush(self, sws, wave_s, vt0, vt1, st, wsdbg, nfixed=None):
        if not DIAG: return
        A = self.A
        A("s_mov_b64 exec, 1", f"s_lshl_b32 s{st}, s2, 3", f"s_add_u32 s{st}, s{st}, s{wave_s}",
          f"s_lshl_b32 s{st}, s{st}, 6", f"s_add_u32 s{st}, s{st}, {wsdbg + self.kid*0x20000}", f"v_mov_b32 v{vt0}, 0")
        for i in range(nfixed or self.n):
            A(f"v_mov_b32 v{vt1}, s{self.base+2*i}",
              f"buffer_store_dword v{vt1}, v{vt0}, s[{sws}:{sws+3}], s{st} offen offset:{4*i}", "s_nop 1")
```

```python
import struct
from asmlib import *
from layout import *

def f32bits(x):
    return struct.unpack("<I", struct.pack("<f", x))[0]

XL_TT = 33792
XL_S = 1056
XL_H = 528
L_XN = 0
L_WQ = 2 * XL_TT
L_KV = L_WQ + 65536
K1_LDS = L_KV + 16384

def decode_gj(A, sid, sg, sj, st):
    A(f"s_and_b32 s{sg}, s{sid}, 7",
      f"s_lshr_b32 s{st}, s{sid}, 6",
      f"s_lshl_b32 s{st}, s{st}, 3",
      f"s_or_b32 s{sg}, s{sg}, s{st}",
      f"s_lshr_b32 s{sj}, s{sid}, 3",
      f"s_and_b32 s{sj}, s{sj}, 7")

def panel_voff(A, d, lane, t0, t1, pitch):
    A(f"v_lshrrev_b32 {v(t0)}, 3, {v(lane)}",
      f"v_bfe_u32 {v(t1)}, {v(lane)}, 4, 1",
      f"v_lshlrev_b32 {v(t1)}, 2, {v(t1)}",
      f"v_and_b32 {v(d)}, 7, {v(lane)}",
      f"v_xor_b32 {v(d)}, {v(d)}, {v(t1)}",
      f"v_lshlrev_b32 {v(d)}, 4, {v(d)}",
      f"v_mul_u32_u24 {v(t0)}, {pitch}, {v(t0)}",
      f"v_add_u32 {v(d)}, {v(d)}, {v(t0)}")

def tr_base(A, d, lane, fh_sgpr_or_int, hrows, t0, t1, t2):
    A(f"v_bfe_u32 {v(t0)}, {v(lane)}, 2, 2",
      f"v_lshrrev_b32 {v(t1)}, 5, {v(lane)}",
      f"v_mul_u32_u24 {v(t1)}, {hrows}, {v(t1)}",
      f"v_add_u32 {v(t1)}, {v(t1)}, {v(t0)}",
      f"v_lshlrev_b32 {v(d)}, 7, {v(t1)}",
      f"v_lshrrev_b32 {v(t0)}, 1, {v(t0)}")
    if isinstance(fh_sgpr_or_int, int):
        A(f"v_xor_b32 {v(t0)}, {fh_sgpr_or_int}, {v(t0)}")
    else:
        A(f"v_xor_b32 {v(t0)}, {fh_sgpr_or_int}, {v(t0)}")
    A(f"v_lshlrev_b32 {v(t0)}, 6, {v(t0)}",
      f"v_add_u32 {v(d)}, {v(d)}, {v(t0)}",
      f"v_bfe_u32 {v(t0)}, {v(lane)}, 4, 1",
      f"v_lshlrev_b32 {v(t0)}, 5, {v(t0)}",
      f"v_add_u32 {v(d)}, {v(d)}, {v(t0)}",
      f"v_and_b32 {v(t0)}, 3, {v(lane)}",
      f"v_lshlrev_b32 {v(t0)}, 3, {v(t0)}",
      f"v_add_u32 {v(d)}, {v(d)}, {v(t0)}")

def gen_k1(A, name="k1_kernel"):
    A.raw(f".globl {name}\n.p2align 8\n.type {name},@function\n{name}:")
    END = f"{name}_end"
    SX, SWQ, SWKV, SWS, SPF = 4, 8, 12, 16, 20
    G, J, W, T0, T1, T2, T3 = 24, 25, 26, 27, 28, 29, 30
    MASK = 31
    A(f"s_cmp_ge_u32 s2, 256", f"s_cbranch_scc1 {END}")
    ST = Stamps(A, 64, 0)
    ST.stamp(True); ST.stamp()
    A("s_load_dwordx8 s[32:39], s[0:1], 0",
      "s_load_dwordx2 s[40:41], s[0:1], 32",
      "s_load_dwordx4 s[44:47], s[0:1], 48",
      "s_load_dwordx2 s[48:49], s[0:1], 64",
      "s_load_dwordx2 s[50:51], s[0:1], 88")
    decode_gj(A, 2, G, J, T0)
    LANE = 1
    A(f"v_lshrrev_b32 v2, 6, v0", f"v_and_b32 {v(LANE)}, 63, v0", "s_nop 0",
      f"v_readfirstlane_b32 s{W}, v2", f"s_mov_b32 s{MASK}, 0xffff0000")
    A("s_waitcnt lgkmcnt(0)")
    srd(A, SX, 32, S * D * 2)
    srd(A, SWQ, 34, D * D * 2)
    srd(A, SWS, 50, WS_SIZE)
    A(f"s_cmp_lt_u32 s{J}, 4",
      f"s_cselect_b32 s{SWKV}, s36, s38", f"s_cselect_b32 s{SWKV+1}, s37, s39",
      f"s_mov_b32 s{SWKV+2}, {D*DH*2}", f"s_mov_b32 s{SWKV+3}, 0x00020000")
    XR, FR = 8, 40
    A(f"s_lshl_b32 s{T0}, s{G}, 6", f"s_lshl_b32 s{T1}, s{W}, 3", f"s_add_u32 s{T0}, s{T0}, s{T1}",
      f"v_lshrrev_b32 v2, 3, {v(LANE)}", f"v_add_u32 v2, s{T0}, v2", "v_lshlrev_b32 v2, 10, v2",
      f"v_and_b32 v3, 7, {v(LANE)}", "v_lshlrev_b32 v3, 4, v3", "v_add_u32 v2, v2, v3")
    for c in range(8):
        A(f"buffer_load_dwordx4 {v(XR+4*c,4)}, v2, s[{SX}:{SX+3}], 0 offen offset:{128*c}")
    A(f"v_lshlrev_b32 v3, 4, {v(LANE)}")
    A(f"s_lshl_b32 s{T0}, s{W}, 11")
    for i in range(2):
        A(f"s_add_u32 s{T1}, s{T0}, {i*1024}", f"s_add_u32 m0, s{T1}, {L_KV}", "s_nop 0",
          f"buffer_load_dwordx4 v3, s[{SWKV}:{SWKV+3}], s{T1} offen lds")
    panel_voff(A, 4, LANE, 5, 6, 1024)
    A(f"s_lshl_b32 s{T0}, s{J}, 7", f"v_add_u32 v4, s{T0}, v4")
    A(f"s_lshl_b32 s{T0}, s{W}, 16", f"s_lshl_b32 s{T2}, s{W}, 13")
    for i in range(8):
        A(f"s_add_u32 s{T1}, s{T0}, {i*8192}", f"s_add_u32 m0, s{T2}, {L_WQ + i*1024}", "s_nop 0",
          f"buffer_load_dwordx4 v4, s[{SWQ}:{SWQ+3}], s{T1} offen lds")
    NPF = 2
    PFD = 120
    L_nopf = A.newlabel("nopf")
    A(f"s_cmp_lt_u32 s{W}, 4", f"s_cbranch_scc1 {L_nopf}")
    for wv, ptr, nbytes, per in ((4, 40, D*D*2, 16), (5, 44, D*F*2, 56), (6, 46, D*F*2, 56), (7, 48, D*F*2, 56)):
        Ln = A.newlabel("pf")
        A(f"s_cmp_eq_u32 s{W}, {wv}", f"s_cbranch_scc0 {Ln}")
        srd(A, SPF, ptr, nbytes)
        A(f"s_mul_i32 s{T0}, s2, {per}")
        if per == 16:
            A(f"v_and_b32 v5, 15, {v(LANE)}")
        else:
            A(f"v_min_u32 v5, {per-1}, {v(LANE)}")
        A(f"v_add_u32 v5, s{T0}, v5", "v_lshlrev_b32 v5, 7, v5",
          f"buffer_load_dword {v(PFD)}, v5, s[{SPF}:{SPF+3}], 0 offen",
          f"buffer_load_dword {v(PFD+1)}, v5, s[{SPF}:{SPF+3}], 0 offen offset:64")
        A.label(Ln)
    A(f"s_waitcnt vmcnt({10+NPF})")
    L_ln = A.newlabel("ln")
    A(f"s_branch {L_ln}")
    A.label(L_nopf)
    A("s_waitcnt vmcnt(10)")
    A.label(L_ln)
    ST.stamp()
    for i in range(32):
        A(f"v_lshlrev_b32 {v(FR+2*i)}, 16, {v(XR+i)}", f"v_and_b32 {v(FR+2*i+1)}, s{MASK}, {v(XR+i)}")
    AC = 104
    for q in range(4):
        A(f"v_pk_add_f32 {v(AC+2*q,2)}, {v(FR+2*q,2)}, {v(FR+8+2*q,2)}")
    for i in range(16, 64, 2):
        q = (i // 2) % 4
        A(f"v_pk_add_f32 {v(AC+2*q,2)}, {v(AC+2*q,2)}, {v(FR+i,2)}")
    A(f"v_pk_add_f32 {v(AC,2)}, {v(AC,2)}, {v(AC+2,2)}", f"v_pk_add_f32 {v(AC+4,2)}, {v(AC+4,2)}, {v(AC+6,2)}",
      f"v_pk_add_f32 {v(AC,2)}, {v(AC,2)}, {v(AC+4,2)}", f"v_add_f32 {v(AC)}, {v(AC)}, {v(AC+1)}")
    RED8 = ["quad_perm:[1,0,3,2]", "quad_perm:[2,3,0,1]", "row_half_mirror"]
    dpp_reduce(A, "v_add_f32", AC, None, RED8)
    MEAN, VAR, RR, CC = 112, 114, 116, 118
    A(f"v_mul_f32 {v(MEAN)}, {f32bits(1/512):#x}, {v(AC)}")
    for i in range(0, 64, 2):
        A(f"v_pk_add_f32 {v(FR+i,2)}, {v(FR+i,2)}, {v(MEAN,2)} op_sel_hi:[1,0] neg_lo:[0,1] neg_hi:[0,1]")
    for q in range(4):
        A(f"v_pk_mul_f32 {v(AC+2*q,2)}, {v(FR+2*q,2)}, {v(FR+2*q,2)}")
    for i in range(8, 64, 2):
        q = (i // 2) % 4
        A(f"v_pk_fma_f32 {v(AC+2*q,2)}, {v(FR+i,2)}, {v(FR+i,2)}, {v(AC+2*q,2)}")
    A(f"v_pk_add_f32 {v(AC,2)}, {v(AC,2)}, {v(AC+2,2)}", f"v_pk_add_f32 {v(AC+4,2)}, {v(AC+4,2)}, {v(AC+6,2)}",
      f"v_pk_add_f32 {v(AC,2)}, {v(AC,2)}, {v(AC+4,2)}", f"v_add_f32 {v(AC)}, {v(AC)}, {v(AC+1)}")
    dpp_reduce(A, "v_add_f32", AC, None, RED8)
    def round_bf16(r):
        A(f"v_cvt_pk_bf16_f32 {v(r)}, {v(r)}, {v(r)}", f"v_lshlrev_b32 {v(r)}, 16, {v(r)}")
    A(f"v_mul_f32 {v(VAR)}, {f32bits(1/512):#x}, {v(AC)}")
    round_bf16(VAR)
    A(f"v_add_f32 {v(VAR)}, {f32bits(1e-5):#x}, {v(VAR)}")
    round_bf16(VAR)
    A(f"v_sqrt_f32 {v(VAR)}, {v(VAR)}", "s_nop 0")
    round_bf16(VAR)
    A(f"v_rcp_f32 {v(RR)}, {v(VAR)}",
      f"v_mov_b32 {v(CC)}, {v(MEAN)}")
    round_bf16(CC)
    A(f"v_sub_f32 {v(CC)}, {v(MEAN)}, {v(CC)}", f"v_mul_f32 {v(CC)}, {v(CC)}, {v(RR)}")
    for i in range(0, 64, 2):
        A(f"v_pk_fma_f32 {v(FR+i,2)}, {v(FR+i,2)}, {v(RR,2)}, {v(CC,2)} op_sel_hi:[1,0,0]")
    for i in range(32):
        A(f"v_cvt_pk_bf16_f32 {v(XR+i)}, {v(FR+2*i)}, {v(FR+2*i+1)}")
    A(f"s_lshr_b32 s{T0}, s{W}, 2", f"s_mul_i32 s{T0}, s{T0}, {XL_TT}",
      f"s_and_b32 s{T1}, s{W}, 3", f"s_lshl_b32 s{T1}, s{T1}, 7", f"s_add_u32 s{T0}, s{T0}, s{T1}",
      f"v_lshrrev_b32 v2, 3, {v(LANE)}", "v_lshlrev_b32 v2, 4, v2", f"v_add_u32 v2, s{T0}, v2",
      f"v_bfe_u32 v3, {v(LANE)}, 1, 2", f"v_mul_u32_u24 v3, {XL_S}, v3", "v_add_u32 v2, v2, v3",
      f"v_and_b32 v3, 1, {v(LANE)}", f"v_mul_u32_u24 v3, {XL_H}, v3", "v_add_u32 v2, v2, v3")
    for c in range(8):
        A(f"ds_write_b128 v2, {v(XR+4*c,4)} offset:{L_XN + c*4*XL_S}")
    ST.stamp()
    L_w47 = A.newlabel("w47")
    L_bar = A.newlabel("bar")
    A(f"s_cmp_lt_u32 s{W}, 4", f"s_cbranch_scc0 {L_w47}")
    A("s_waitcnt vmcnt(0) lgkmcnt(0)", f"s_branch {L_bar}")
    A.label(L_w47)
    A(f"s_waitcnt vmcnt({NPF}) lgkmcnt(0)")
    A.label(L_bar)
    ST.stamp()
    A("s_barrier")
    ST.stamp()
    L_kv, L_misc = A.newlabel("kv"), A.newlabel("misc")
    A(f"s_cmp_eq_u32 s{W}, 4", f"s_cbranch_scc1 {L_kv}",
      f"s_cmp_gt_u32 s{W}, 4", f"s_cbranch_scc1 {L_misc}")
    TT, FH = T2, T3
    A(f"s_and_b32 s{TT}, s{W}, 1", f"s_lshr_b32 s{FH}, s{W}, 1")
    AB, BB = 2, 3
    tr_base(A, AB, LANE, f"s{FH}", 8, 4, 5, 6)
    A(f"v_add_u32 {v(AB)}, {L_WQ}, {v(AB)}")
    A(f"s_mul_i32 s{T0}, s{TT}, {XL_TT}",
      f"v_lshrrev_b32 v4, 5, {v(LANE)}", f"v_mul_u32_u24 {v(BB)}, {XL_H}, v4",
      f"v_and_b32 v4, 31, {v(LANE)}", "v_lshlrev_b32 v4, 4, v4", f"v_add_u32 {v(BB)}, {v(BB)}, v4",
      f"v_add_u32 {v(BB)}, s{T0}, {v(BB)}")
    ACC, AS, BS, NS = 40, 56, 72, 4
    def qreads(st):
        k = st % NS
        A(f"ds_read_b64_tr_b16 {v(AS+4*k,2)}, {v(AB)} offset:{st*2048}",
          f"ds_read_b64_tr_b16 {v(AS+4*k+2,2)}, {v(AB)} offset:{st*2048+512}",
          f"ds_read_b128 {v(BS+4*k,4)}, {v(BB)} offset:{L_XN + st*XL_S}")
    for st in range(NS-1):
        qreads(st)
    for st in range(32):
        if st + NS - 1 < 32:
            qreads(st + NS - 1)
        left = min(NS - 1, 31 - st)
        A(f"s_waitcnt lgkmcnt({3*left})")
        k = st % NS
        A(f"v_mfma_f32_32x32x16_bf16 {v(ACC,16)}, {v(AS+4*k,4)}, {v(BS+4*k,4)}, {'0' if st==0 else v(ACC,16)}")
    ST.stamp()
    A("s_nop 15", f"s_mov_b32 s52, {f32bits(QSCALE):#x}")
    for i in range(0, 16, 2):
        A(f"v_pk_mul_f32 {v(ACC+i,2)}, {v(ACC+i,2)}, s[52:53] op_sel_hi:[1,0]")
    N0, N1, TMP = 88, 89, 90
    A(f"v_mul_f32 {v(N0)}, {v(ACC)}, {v(ACC)}", f"v_mul_f32 {v(N1)}, {v(ACC+8)}, {v(ACC+8)}")
    for i in range(1, 8):
        A(f"v_fma_f32 {v(N0)}, {v(ACC+i)}, {v(ACC+i)}, {v(N0)}", f"v_fma_f32 {v(N1)}, {v(ACC+8+i)}, {v(ACC+8+i)}, {v(N1)}")
    swap_reduce(A, "v_add_f32", N0, TMP, 32)
    swap_reduce(A, "v_add_f32", N1, TMP, 32)
    A(f"v_max_f32 {v(N0)}, {v(N0)}, {v(N1)}")
    dpp_reduce(A, "v_max_f32", N0, None, ["row_ror:8", "row_ror:4", "row_ror:2", "row_ror:1"])
    swap_reduce(A, "v_max_f32", N0, TMP, 16)
    PK = 92
    for i in range(8):
        A(f"v_cvt_pk_bf16_f32 {v(PK+i)}, {v(ACC+2*i)}, {v(ACC+2*i+1)}")
    A(f"s_lshl_b32 s{T0}, s{G}, 1", f"s_add_u32 s{T0}, s{T0}, s{TT}",
      f"s_lshl_b32 s{T1}, s{T0}, 5", f"s_lshl_b32 s{TT}, s{J}, 2", f"s_add_u32 s{T1}, s{T1}, s{TT}",
      f"s_lshl_b32 s{TT}, s{FH}, 1", f"s_add_u32 s{T1}, s{T1}, s{TT}",
      f"s_lshl_b32 s{T1}, s{T1}, 10", f"s_add_u32 s{T1}, s{T1}, {WS_QF}",
      f"v_lshlrev_b32 v4, 4, {v(LANE)}",
      f"buffer_store_dwordx4 {v(PK,4)}, v4, s[{SWS}:{SWS+3}], s{T1} offen",
      f"buffer_store_dwordx4 {v(PK+4,4)}, v4, s[{SWS}:{SWS+3}], s{T1} offen offset:1024")
    A(f"s_lshl_b32 s{T0}, s{T0}, 4", f"s_lshl_b32 s{T1}, s{J}, 1", f"s_add_u32 s{T0}, s{T0}, s{T1}",
      f"s_add_u32 s{T0}, s{T0}, s{FH}", f"s_lshl_b32 s{T0}, s{T0}, 2", f"s_add_u32 s{T0}, s{T0}, {WS_QN}",
      "v_mov_b32 v4, 0", "s_mov_b64 exec, 1",
      f"buffer_store_dword {v(N0)}, v4, s[{SWS}:{SWS+3}], s{T0} offen",
      f"s_branch {END}")
    A.label(L_kv)
    T16 = T2
    A(f"s_and_b32 s{T16}, s{J}, 3")
    XB, WB = 2, 3
    A(f"s_lshr_b32 s{T0}, s{T16}, 1", f"s_mul_i32 s{T0}, s{T0}, {XL_TT}",
      f"s_and_b32 s{T1}, s{T16}, 1", f"s_lshl_b32 s{T1}, s{T1}, 8", f"s_add_u32 s{T0}, s{T0}, s{T1}",
      f"v_lshrrev_b32 v4, 5, {v(LANE)}", f"v_mul_u32_u24 {v(XB)}, {XL_S}, v4",
      f"v_bfe_u32 v4, {v(LANE)}, 4, 1", f"v_mul_u32_u24 v4, {XL_H}, v4", f"v_add_u32 {v(XB)}, {v(XB)}, v4",
      f"v_and_b32 v4, 15, {v(LANE)}", "v_lshlrev_b32 v4, 4, v4", f"v_add_u32 {v(XB)}, {v(XB)}, v4",
      f"v_add_u32 {v(XB)}, s{T0}, {v(XB)}")
    A(f"v_lshrrev_b32 v4, 4, {v(LANE)}", f"v_lshlrev_b32 {v(WB)}, 8, v4",
      f"v_bfe_u32 v4, {v(LANE)}, 2, 2", "v_lshlrev_b32 v4, 5, v4", f"v_add_u32 {v(WB)}, {v(WB)}, v4",
      f"v_and_b32 v4, 3, {v(LANE)}", "v_lshlrev_b32 v4, 3, v4", f"v_add_u32 {v(WB)}, {v(WB)}, v4",
      f"v_add_u32 {v(WB)}, {L_KV}, {v(WB)}")
    def kvloop(form):
        def rd(st):
            k = st % NS
            A(f"ds_read_b64_tr_b16 {v(AS+4*k,2)}, {v(WB)} offset:{st*1024}",
              f"ds_read_b64_tr_b16 {v(AS+4*k+2,2)}, {v(WB)} offset:{st*1024+128}",
              f"ds_read_b128 {v(BS+4*k,4)}, {v(XB)} offset:{L_XN + st*2*XL_S}")
        for st in range(NS-1):
            rd(st)
        for st in range(16):
            if st + NS - 1 < 16:
                rd(st + NS - 1)
            left = min(NS - 1, 15 - st)
            A(f"s_waitcnt lgkmcnt({3*left})")
            k = st % NS
            wf, xf = v(AS+4*k, 4), v(BS+4*k, 4)
            p, q = (wf, xf) if form == 0 else (xf, wf)
            A(f"v_mfma_f32_16x16x32_bf16 {v(ACC,4)}, {p}, {q}, {'0' if st==0 else v(ACC,4)}")
        A("s_nop 15")
    L_v = A.newlabel("vform")
    A(f"s_cmp_ge_u32 s{J}, 4", f"s_cbranch_scc1 {L_v}")
    kvloop(0)
    A(f"v_mul_f32 {v(N0)}, {v(ACC)}, {v(ACC)}")
    for i in range(1, 4):
        A(f"v_fma_f32 {v(N0)}, {v(ACC+i)}, {v(ACC+i)}, {v(N0)}")
    swap_reduce(A, "v_add_f32", N0, TMP, 16)
    swap_reduce(A, "v_add_f32", N0, TMP, 32)
    dpp_reduce(A, "v_max_f32", N0, None, ["row_ror:8", "row_ror:4", "row_ror:2", "row_ror:1"])
    A(f"v_cvt_pk_bf16_f32 {v(PK)}, {v(ACC)}, {v(ACC+1)}", f"v_cvt_pk_bf16_f32 {v(PK+1)}, {v(ACC+2)}, {v(ACC+3)}")
    A(f"s_lshl_b32 s{T0}, s{G}, 1", f"s_lshr_b32 s{T1}, s{T16}, 1", f"s_add_u32 s{T0}, s{T0}, s{T1}",
      f"s_lshl_b32 s{T0}, s{T0}, 10", f"s_and_b32 s{T1}, s{T16}, 1", f"s_lshl_b32 s{T1}, s{T1}, 8",
      f"s_add_u32 s{T0}, s{T0}, s{T1}", f"s_add_u32 s{T0}, s{T0}, {WS_KF}",
      f"v_bfe_u32 v4, {v(LANE)}, 4, 1", "v_lshlrev_b32 v4, 9, v4",
      f"v_and_b32 v5, 15, {v(LANE)}", "v_lshlrev_b32 v5, 4, v5", "v_add_u32 v4, v4, v5",
      f"v_lshrrev_b32 v5, 5, {v(LANE)}", "v_lshlrev_b32 v5, 3, v5", "v_add_u32 v4, v4, v5",
      f"buffer_store_dwordx2 {v(PK,2)}, v4, s[{SWS}:{SWS+3}], s{T0} offen")
    A(f"s_lshl_b32 s{T0}, s{G}, 2", f"s_add_u32 s{T0}, s{T0}, s{T16}", f"s_lshl_b32 s{T0}, s{T0}, 2",
      f"s_add_u32 s{T0}, s{T0}, {WS_KN}", "v_mov_b32 v4, 0", "s_mov_b64 exec, 1",
      f"buffer_store_dword {v(N0)}, v4, s[{SWS}:{SWS+3}], s{T0} offen",
      f"s_branch {END}")
    A.label(L_v)
    kvloop(1)
    A(f"v_max_f32 {v(N0)}, |{v(ACC)}|, |{v(ACC+1)}|", f"v_max3_f32 {v(N0)}, |{v(ACC+2)}|, |{v(ACC+3)}|, {v(N0)}")
    dpp_reduce(A, "v_max_f32", N0, None, ["row_ror:8", "row_ror:4", "row_ror:2", "row_ror:1"])
    swap_reduce(A, "v_max_f32", N0, TMP, 16)
    swap_reduce(A, "v_max_f32", N0, TMP, 32)
    A(f"v_cvt_pk_bf16_f32 {v(PK)}, {v(ACC)}, {v(ACC+1)}", f"v_cvt_pk_bf16_f32 {v(PK+1)}, {v(ACC+2)}, {v(ACC+3)}")
    A(f"s_lshl_b32 s{T0}, s{G}, 1", f"s_lshr_b32 s{T1}, s{T16}, 1", f"s_add_u32 s{T0}, s{T0}, s{T1}",
      f"s_lshl_b32 s{T0}, s{T0}, 10", f"s_and_b32 s{T1}, s{T16}, 1", f"s_lshl_b32 s{T1}, s{T1}, 9",
      f"s_add_u32 s{T0}, s{T0}, s{T1}", f"s_add_u32 s{T0}, s{T0}, {WS_VF}",
      f"v_lshrrev_b32 v4, 5, {v(LANE)}", "v_lshlrev_b32 v4, 8, v4",
      f"v_and_b32 v5, 15, {v(LANE)}", "v_lshlrev_b32 v5, 4, v5", "v_add_u32 v4, v4, v5",
      f"v_bfe_u32 v5, {v(LANE)}, 4, 1", "v_lshlrev_b32 v5, 3, v5", "v_add_u32 v4, v4, v5",
      f"buffer_store_dwordx2 {v(PK,2)}, v4, s[{SWS}:{SWS+3}], s{T0} offen")
    A(f"s_lshl_b32 s{T0}, s{G}, 2", f"s_add_u32 s{T0}, s{T0}, s{T16}", f"s_lshl_b32 s{T0}, s{T0}, 2",
      f"s_add_u32 s{T0}, s{T0}, {WS_VN}", "v_mov_b32 v4, 0", "s_mov_b64 exec, 1",
      f"buffer_store_dword {v(N0)}, v4, s[{SWS}:{SWS+3}], s{T0} offen",
      f"s_branch {END}")
    A.label(L_misc)
    L_xn = A.newlabel("xn")
    A(f"s_cmp_ge_u32 s{W}, 6", f"s_cbranch_scc1 {L_xn}",
      f"s_cmp_eq_u32 s{J}, 0", f"s_cbranch_scc0 {END}",
      f"s_lshl_b32 s{T0}, s{G}, 8", f"s_add_u32 s{T0}, s{T0}, {WS_FLAG}",
      f"v_lshlrev_b32 v4, 2, {v(LANE)}", "v_mov_b32 v5, 0",
      f"buffer_store_dword v5, v4, s[{SWS}:{SWS+3}], s{T0} offen",
      f"s_branch {END}")
    A.label(L_xn)
    A(f"s_lshr_b32 s{T0}, s{J}, 2", f"s_and_b32 s{T1}, s{J}, 3", f"s_lshl_b32 s{T1}, s{T1}, 3",
      f"s_sub_u32 s{T2}, s{W}, 6", f"s_lshl_b32 s{T2}, s{T2}, 2", f"s_add_u32 s{T1}, s{T1}, s{T2}",
      f"s_mul_i32 s{T2}, s{T0}, {XL_TT}", f"s_mul_i32 s{T3}, s{T1}, {XL_S}", f"s_add_u32 s{T2}, s{T2}, s{T3}",
      f"v_lshrrev_b32 v4, 5, {v(LANE)}", f"v_mul_u32_u24 v2, {XL_H}, v4",
      f"v_and_b32 v4, 31, {v(LANE)}", "v_lshlrev_b32 v4, 4, v4", "v_add_u32 v2, v2, v4",
      f"v_add_u32 v2, s{T2}, v2")
    for i in range(4):
        A(f"ds_read_b128 {v(40+4*i,4)}, v2 offset:{L_XN + i*XL_S}")
    A(f"s_lshl_b32 s{T2}, s{G}, 1", f"s_add_u32 s{T2}, s{T2}, s{T0}", f"s_lshl_b32 s{T2}, s{T2}, 5",
      f"s_add_u32 s{T2}, s{T2}, s{T1}", f"s_lshl_b32 s{T2}, s{T2}, 10", f"s_add_u32 s{T2}, s{T2}, {WS_XN}",
      f"v_lshlrev_b32 v4, 4, {v(LANE)}")
    for i in range(4):
        A(f"s_waitcnt lgkmcnt({3-i})",
          f"buffer_store_dwordx4 {v(40+4*i,4)}, v4, s[{SWS}:{SWS+3}], s{T2} offen offset:{i*1024}")
    A.label(END)
    if DIAG:
        A("s_cmp_ge_u32 s2, 256", f"s_cbranch_scc1 {END}_x")
        A("s_waitcnt vmcnt(0)")
        ST.n = 7
        ST.stamp(); ST.stamp(True)
        ST.flush(SWS, W, 2, 3, T0, WS_DBG)
        A.label(END + "_x")
    A("s_endpgm")
    return dict(name=name, vgpr=128, sgpr=100, accum=128, lds=K1_LDS, block=512, grid=256)
```

```python
from asmlib import *
from layout import *
from k1 import f32bits, decode_gj, panel_voff, tr_base

L_XN = 0
L_PART0 = 65536
PART_W = 4 * 2304
L_RING = L_PART0 + 4 * PART_W
RING = 14336
L_FLAG = L_RING + 4 * RING
K2_LDS = L_FLAG + 64
F_XN, F_G1, F_RED, F_A0 = 0, 4, 8, 12

LOG2E = 1.4426950408889634
T2 = 3600.0
VMAX = float(2**40)
SPIN_MAX = 1 << 22

SWS, SWG, SWU, SWD = 4, 8, 12, 16
G, J, W, WR = 20, 21, 22, 23
T0, T1, T2s, T3, T4 = 24, 25, 26, 27, 28
SPIN = 29
LANE = 1

def lds_signal(A, flag_off, vaddr, vone, extra_s=None):
    A(f"v_mov_b32 {v(vaddr)}, {L_FLAG + flag_off}")
    if extra_s is not None:
        A(f"v_add_u32 {v(vaddr)}, s{extra_s}, {v(vaddr)}")
    A(f"v_mov_b32 {v(vone)}, 1", "s_mov_b64 exec, 1", f"ds_add_u32 {v(vaddr)}, {v(vone)}", "s_mov_b64 exec, -1")

def lds_wait(A, flag_off, count, vaddr, vtmp, fail, extra_s=None):
    L = A.newlabel("ldsw")
    Ld = A.newlabel("ldsd")
    A(f"v_mov_b32 {v(vaddr)}, {L_FLAG + flag_off}")
    if extra_s is not None:
        A(f"v_add_u32 {v(vaddr)}, s{extra_s}, {v(vaddr)}")
    A(f"s_mov_b32 s{SPIN}, {SPIN_MAX}")
    A.label(L)
    A(f"ds_read_b32 {v(vtmp)}, {v(vaddr)}", "s_waitcnt lgkmcnt(0)",
      f"v_readfirstlane_b32 s{T0}, {v(vtmp)}", "s_nop 3",
      f"s_cmp_ge_u32 s{T0}, {count}", f"s_cbranch_scc1 {Ld}",
      f"s_sub_u32 s{SPIN}, s{SPIN}, 1", f"s_cmp_eq_u32 s{SPIN}, 0", f"s_cbranch_scc1 {fail}",
      "s_sleep 1", f"s_branch {L}")
    A.label(Ld)

def silu_block(A, dst, src, n, tmp, slog):
    raise NotImplementedError

def gen_role_g(A, END, ST):
    FAIL = END
    VL16, VG1, VA0, VA1, VAB0, VAB1, VB, VT0, VT1, VT2 = 2, 3, 4, 5, 6, 7, 8, 9, 10, 11
    RB = 30
    SLOT, SO0, SO1, KS = 31, 32, 33, 34
    SLOG = 36
    CNT = 38
    ACC = 128
    A(f"s_sub_u32 s{WR}, s{W}, 4",
      f"s_mul_i32 s{RB}, s{WR}, {RING}", f"s_add_u32 s{RB}, s{RB}, {L_RING}",
      f"v_lshlrev_b32 {v(VL16)}, 4, {v(LANE)}",
      f"s_mov_b32 s{SLOG}, {f32bits(-LOG2E):#x}")
    L_g2 = A.newlabel("gemm2")
    L_skip1 = A.newlabel("skip1")
    A(f"s_cmp_eq_u32 s{J}, 7", f"s_cbranch_scc1 {L_skip1}")
    A(f"s_lshl_b32 s{T0}, s{G}, 16", f"s_lshl_b32 s{T1}, s{WR}, 14", f"s_add_u32 s{T0}, s{T0}, s{T1}",
      f"s_add_u32 s{T0}, s{T0}, {WS_XN}")
    for i in range(16):
        A(f"s_add_u32 m0, s{T1}, {L_XN + i*1024}", f"s_add_u32 s{T2s}, s{T0}, {i*1024}",
          f"buffer_load_dwordx4 {v(VL16)}, s[{SWS}:{SWS+3}], s{T2s} offen lds")
    panel_voff(A, VG1, LANE, VT0, VT1, 2*F)
    A(f"s_lshl_b32 s{T0}, s{J}, 9", f"s_lshl_b32 s{T1}, s{WR}, 7", f"s_add_u32 s{T0}, s{T0}, s{T1}",
      f"v_add_u32 {v(VG1)}, s{T0}, {v(VG1)}")
    NST = 3
    def dma1(slot_s, slot_imm, so0, so1):
        for mat, sr in ((0, SWG), (1, SWU)):
            for half, so in ((0, so0), (1, so1)):
                off = mat*2048 + half*1024
                if slot_s is None:
                    A(f"s_add_u32 m0, s{RB}, {slot_imm + off}")
                else:
                    A(f"s_add_u32 m0, s{slot_s}, {off}")
                A("s_nop 0", f"buffer_load_dwordx4 {v(VG1)}, s[{sr}:{sr+3}], s{so} offen lds")
    for st in range(NST):
        A(f"s_mov_b32 s{SO0}, {16*st*2*F}", f"s_mov_b32 s{SO1}, {(16*st+8)*2*F}")
        dma1(None, st*4096, SO0, SO1)
    tr_base(A, VAB0, LANE, 0, 8, VT0, VT1, VT2)
    tr_base(A, VAB1, LANE, 1, 8, VT0, VT1, VT2)
    A(f"v_add_u32 {v(VAB0)}, s{RB}, {v(VAB0)}", f"v_add_u32 {v(VAB1)}, s{RB}, {v(VAB1)}",
      f"v_mov_b32 {v(VB)}, {v(VL16)}")
    for i in range(128):
        A(f"v_mov_b32 {v(ACC+i)}, 0")
    A(f"s_waitcnt vmcnt({4*NST})")
    lds_signal(A, F_XN, VT0, VT1)
    lds_wait(A, F_XN, 4, VT0, VT1, FAIL)
    ST.stamp()
    AS, BS = 64, 96
    def areg(set_, mat, un): return AS + 16*set_ + 4*(mat*2+un)
    def breg(set_, tt): return BS + 8*set_ + 4*tt
    def acc(mat, un, tt): return ACC + 16*((mat*2+un)*2+tt)
    def reads(set_):
        L = []
        for mat in range(2):
            for un in range(2):
                va = VA0 if un == 0 else VA1
                r = areg(set_, mat, un)
                L.append(f"ds_read_b64_tr_b16 {v(r,2)}, {v(va)} offset:{mat*2048}")
                L.append(f"ds_read_b64_tr_b16 {v(r+2,2)}, {v(va)} offset:{mat*2048+512}")
        Lb = [f"ds_read_b128 {v(breg(set_,tt),4)}, {v(VB)} offset:{L_XN + tt*32768}" for tt in range(2)]
        return Lb[:1] + L[:4] + Lb[1:] + L[4:]
    A(f"s_waitcnt vmcnt({4*(NST-1)})",
      f"v_mov_b32 {v(VA0)}, {v(VAB0)}", f"v_mov_b32 {v(VA1)}, {v(VAB1)}")
    A(*reads(0))
    A(f"s_mov_b32 s{SLOT}, 0", f"s_mov_b32 s{KS}, {NST}", f"s_mov_b32 s{CNT}, 16")
    L1 = A.newlabel("g1loop")
    A.label(L1)
    for par in range(2):
        mf = []
        for un in range(2):
            for mat in range(2):
                for tt in range(2):
                    mf.append(f"v_mfma_f32_32x32x16_bf16 {v(acc(mat,un,tt),16)}, {v(areg(par,mat,un),4)}, {v(breg(par,tt),4)}, {v(acc(mat,un,tt),16)}")
        rd = reads(1-par)
        A("s_waitcnt lgkmcnt(0)")
        A(mf[0])
        A(f"s_min_u32 s{T0}, s{KS}, 31", f"s_mul_i32 s{SO0}, s{T0}, {16*2*F}", f"s_add_u32 s{SO1}, s{SO0}, {8*2*F}",
          f"s_add_u32 s{T1}, s{RB}, s{SLOT}")
        dma1(T1, 0, SO0, SO1)
        A(mf[1])
        A(f"s_add_u32 s{SLOT}, s{SLOT}, 4096", f"s_cmp_eq_u32 s{SLOT}, {NST*4096}", f"s_cselect_b32 s{SLOT}, 0, s{SLOT}",
          f"s_add_u32 s{KS}, s{KS}, 1",
          f"v_add_u32 {v(VA0)}, s{SLOT}, {v(VAB0)}", f"v_add_u32 {v(VA1)}, s{SLOT}, {v(VAB1)}",
          f"v_add_u32 {v(VB)}, 1024, {v(VB)}",
          f"s_waitcnt vmcnt({4*(NST-1)})")
        A(mf[2], *rd[0:3])
        A(mf[3], *rd[3:6])
        A(mf[4], *rd[6:8])
        A(mf[5], *rd[8:10])
        A(mf[6], mf[7])
    A(f"s_sub_u32 s{CNT}, s{CNT}, 1", f"s_cmp_lg_u32 s{CNT}, 0", f"s_cbranch_scc1 {L1}")
    A("s_waitcnt lgkmcnt(0)")
    lds_signal(A, F_G1, VT0, VT1)
    ST.stamp()
    A("s_nop 15")
    TT_, RR = 64, 80
    for un in range(2):
        for tt in range(2):
            g_, u_ = acc(0, un, tt), acc(1, un, tt)
            for i in range(0, 16, 2):
                A(f"v_pk_mul_f32 {v(TT_+i,2)}, {v(g_+i,2)}, s[{SLOG}:{SLOG+1}] op_sel_hi:[1,0]")
            for i in range(16):
                A(f"v_exp_f32 {v(TT_+i)}, {v(TT_+i)}")
            for i in range(0, 16, 2):
                A(f"v_pk_mul_f32 {v(g_+i,2)}, {v(g_+i,2)}, {v(u_+i,2)}")
            for i in range(0, 16, 2):
                A(f"v_pk_add_f32 {v(TT_+i,2)}, {v(TT_+i,2)}, 1.0 op_sel_hi:[1,0]")
            for i in range(16):
                A(f"v_rcp_f32 {v(TT_+i)}, {v(TT_+i)}")
            pk = RR + 8*((un*2+tt) % 2)
            for i in range(0, 16, 2):
                A(f"v_pk_mul_f32 {v(g_+i,2)}, {v(g_+i,2)}, {v(TT_+i,2)}")
            for i in range(8):
                A(f"v_cvt_pk_bf16_f32 {v(pk+i)}, {v(g_+2*i)}, {v(g_+2*i+1)}")
            A(f"s_lshl_b32 s{T0}, s{G}, 1", f"s_add_u32 s{T0}, s{T0}, {tt}", f"s_mul_i32 s{T0}, s{T0}, 112",
              f"s_lshl_b32 s{T1}, s{J}, 4", f"s_add_u32 s{T0}, s{T0}, s{T1}",
              f"s_lshl_b32 s{T1}, s{WR}, 2", f"s_add_u32 s{T0}, s{T0}, s{T1}", f"s_add_u32 s{T0}, s{T0}, {2*un}",
              f"s_lshl_b32 s{T0}, s{T0}, 10", f"s_add_u32 s{T0}, s{T0}, {WS_HF}",
              f"buffer_store_dwordx4 {v(pk,4)}, {v(VL16)}, s[{SWS}:{SWS+3}], s{T0} offen sc1",
              f"buffer_store_dwordx4 {v(pk+4,4)}, {v(VL16)}, s[{SWS}:{SWS+3}], s{T0} offen offset:1024 sc1")
    A("s_waitcnt vmcnt(0)")
    A(f"s_lshl_b32 s{T0}, s{G}, 8", f"s_lshl_b32 s{T1}, s{J}, 4", f"s_add_u32 s{T0}, s{T0}, s{T1}",
      f"s_lshl_b32 s{T1}, s{WR}, 2", f"s_add_u32 s{T0}, s{T0}, s{T1}", f"s_add_u32 s{T0}, s{T0}, {WS_FLAG}",
      f"v_mov_b32 {v(VT0)}, 0", f"v_mov_b32 {v(VT1)}, 1", "s_mov_b64 exec, 1",
      f"buffer_store_dword {v(VT1)}, {v(VT0)}, s[{SWS}:{SWS+3}], s{T0} offen sc1",
      "s_mov_b64 exec, -1", f"s_branch {L_g2}")
    A.label(L_skip1)
    lds_signal(A, F_G1, VT0, VT1)
    if DIAG:
        ST.n -= 2; ST.stamp(); ST.stamp()
    A.label(L_g2)
    ST.stamp()
    DP = 4
    A2, B2 = 64, 96
    WH, WL, SK, SB0, SB1 = 39, 40, 41, 42, 43
    A(f"s_lshr_b32 s{WH}, s{WR}, 1", f"s_and_b32 s{WL}, s{WR}, 1")
    panel_voff(A, VG1, LANE, VT0, VT1, 2*D)
    A(f"s_lshl_b32 s{T0}, s{J}, 7", f"v_add_u32 {v(VG1)}, s{T0}, {v(VG1)}")
    tr_base(A, VAB0, LANE, f"s{WH}", 4, VT0, VT1, VT2)
    A(f"s_xor_b32 s{T0}, s{WH}, 1")
    tr_base(A, VAB1, LANE, f"s{T0}", 4, VT0, VT1, VT2)
    A(f"v_add_u32 {v(VAB0)}, s{RB}, {v(VAB0)}", f"v_add_u32 {v(VAB1)}, s{RB}, {v(VAB1)}")
    A(f"s_mul_i32 s{SK}, s{WR}, {28*16*2*D}",
      f"s_lshl_b32 s{T0}, s{G}, 1", f"s_add_u32 s{T0}, s{T0}, s{WL}", f"s_mul_i32 s{SB0}, s{T0}, {112*1024}",
      f"s_xor_b32 s{T0}, s{T0}, 1", f"s_mul_i32 s{SB1}, s{T0}, {112*1024}",
      f"s_mul_i32 s{T0}, s{WR}, {28*1024}", f"s_add_u32 s{T0}, s{T0}, {WS_HF}",
      f"s_add_u32 s{SB0}, s{SB0}, s{T0}", f"s_add_u32 s{SB1}, s{SB1}, s{T0}")
    def wdma(slot, rel):
        for half in range(2):
            A(f"s_add_u32 m0, s{RB}, {slot*2048 + half*1024}",
              f"s_add_u32 s{T0}, s{SK}, {(rel*16 + half*8)*2*D}",
              f"buffer_load_dwordx4 {v(VG1)}, s[{SWD}:{SWD+3}], s{T0} offen lds")
    def bload(slot, rel):
        for b, sb in ((0, SB0), (1, SB1)):
            A(f"s_add_u32 s{T0}, s{sb}, {rel*1024}",
              f"buffer_load_dwordx4 {v(B2+8*slot+4*b,4)}, {v(VL16)}, s[{SWS}:{SWS+3}], s{T0} offen sc1")
    def areads(st_set):
        L = []
        for aa, va in ((0, VAB0), (1, VAB1)):
            r = A2 + 8*st_set + 4*aa
            L.append(f"ds_read_b64_tr_b16 {v(r,2)}, {v(va)} offset:{st_set*2048}")
            L.append(f"ds_read_b64_tr_b16 {v(r+2,2)}, {v(va)} offset:{st_set*2048+1024}")
        return L
    A("s_waitcnt vmcnt(0)")
    for st in range(DP):
        wdma(st, st)
    for i in range(64):
        A(f"v_mov_b32 {v(ACC+i)}, 0")
    Lp, Lpd = A.newlabel("hpoll"), A.newlabel("hpolld")
    A(f"s_lshl_b32 s{T1}, s{G}, 8", f"s_mul_i32 s{T2s}, s{WR}, 28", f"s_add_u32 s{T1}, s{T1}, s{T2s}",
      f"s_add_u32 s{T1}, s{T1}, {WS_FLAG}",
      f"v_min_u32 {v(VT0)}, 6, {v(LANE)}", f"v_lshlrev_b32 {v(VT0)}, 2, {v(VT0)}",
      f"s_mov_b32 s{SPIN}, {SPIN_MAX}")
    A.label(Lp)
    A(f"buffer_load_dword {v(VT1)}, {v(VT0)}, s[{SWS}:{SWS+3}], s{T1} offen sc1", "s_waitcnt vmcnt(0)",
      f"v_cmp_eq_u32 vcc, 1, {v(VT1)}", "s_nop 4",
      "s_cmp_eq_u64 vcc, exec", f"s_cbranch_scc1 {Lpd}",
      f"s_sub_u32 s{SPIN}, s{SPIN}, 1", f"s_cmp_eq_u32 s{SPIN}, 0", f"s_cbranch_scc1 {FAIL}",
      "s_sleep 2", f"s_branch {Lp}")
    A.label(Lpd)
    ST.stamp()
    for st in range(DP):
        bload(st, st)
    A(*areads(0))
    A(f"s_waitcnt vmcnt({2*(DP-1)})")
    A(f"s_mov_b32 s{CNT}, {28//DP}")
    L2 = A.newlabel("g2loop")
    A.label(L2)
    for k in range(DP):
        nxt = (k+1) % DP
        ar = lambda aa: v(A2 + 8*k + 4*aa, 4)
        br = lambda b: v(B2 + 8*k + 4*b, 4)
        ac = lambda aa, b: v(ACC + 16*(2*aa+b), 16)
        mf = [f"v_mfma_f32_32x32x16_bf16 {ac(aa,b)}, {ar(aa)}, {br(b)}, {ac(aa,b)}" for aa in range(2) for b in range(2)]
        A(f"s_waitcnt vmcnt({4*(DP-2)}) lgkmcnt(0)")
        A(mf[0])
        A(*areads(nxt))
        A(mf[1], mf[2], mf[3])
        A(f"s_cmp_gt_u32 s{CNT}, 1", f"s_cselect_b32 s{T1}, {DP*1024}, 0", f"s_cselect_b32 s{T2s}, {DP*16*2*D}, 0")
        for half in range(2):
            A(f"s_add_u32 m0, s{RB}, {k*2048 + half*1024}",
              f"s_add_u32 s{T0}, s{SK}, s{T2s}", f"s_add_u32 s{T0}, s{T0}, {(k*16 + half*8)*2*D}",
              f"buffer_load_dwordx4 {v(VG1)}, s[{SWD}:{SWD+3}], s{T0} offen lds")
        for b, sb in ((0, SB0), (1, SB1)):
            A(f"s_add_u32 s{T0}, s{sb}, s{T1}", f"s_add_u32 s{T0}, s{T0}, {k*1024}",
              f"buffer_load_dwordx4 {v(B2+8*k+4*b,4)}, {v(VL16)}, s[{SWS}:{SWS+3}], s{T0} offen sc1")
    A(f"s_add_u32 s{SK}, s{SK}, {DP*16*2*D}", f"s_add_u32 s{SB0}, s{SB0}, {DP*1024}", f"s_add_u32 s{SB1}, s{SB1}, {DP*1024}",
      f"s_sub_u32 s{CNT}, s{CNT}, 1", f"s_cmp_lg_u32 s{CNT}, 0", f"s_cbranch_scc1 {L2}")
    A("s_waitcnt vmcnt(0) lgkmcnt(0)")
    ST.stamp()
    A(f"v_add_u32 {v(VT2)}, s{RB}, {v(VL16)}", "s_nop 7")
    for z in range(1, 4):
        for q in range(4):
            A(f"ds_write_b128 {v(VT2)}, {v(ACC+16*z+4*q,4)} offset:{(z-1)*4096 + q*1024}")
    lds_signal(A, F_RED, VT0, VT1)
    lds_wait(A, F_RED, 4, VT0, VT1, FAIL)
    for z in range(1, 4):
        A(f"s_xor_b32 s{T0}, s{WR}, {z}", f"s_mul_i32 s{T0}, s{T0}, {RING}", f"s_add_u32 s{T0}, s{T0}, {L_RING + (z-1)*4096}",
          f"v_add_u32 {v(VT2)}, s{T0}, {v(VL16)}")
        for q in range(4):
            A(f"ds_read_b128 {v(64+16*(z-1)+4*q,4)}, {v(VT2)} offset:{q*1024}")
    for z in range(1, 4):
        A(f"s_waitcnt lgkmcnt({4*(3-z)})")
        for i in range(0, 16, 2):
            A(f"v_pk_add_f32 {v(ACC+i,2)}, {v(ACC+i,2)}, {v(64+16*(z-1)+i,2)}")
    for i in range(0, 16, 2):
        A(f"v_pk_mul_f32 {v(64+i,2)}, {v(ACC+i,2)}, s[{SLOG}:{SLOG+1}] op_sel_hi:[1,0]")
    for i in range(16):
        A(f"v_exp_f32 {v(64+i)}, {v(64+i)}")
    A("s_nop 0")
    for i in range(0, 16, 2):
        A(f"v_pk_add_f32 {v(64+i,2)}, {v(64+i,2)}, 1.0 op_sel_hi:[1,0]")
    for i in range(16):
        A(f"v_rcp_f32 {v(64+i)}, {v(64+i)}")
    A("s_nop 0")
    for i in range(0, 16, 2):
        A(f"v_pk_mul_f32 {v(ACC+i,2)}, {v(ACC+i,2)}, {v(64+i,2)}")
    A(f"s_lshl_b32 s{T0}, s{G}, 1", f"s_add_u32 s{T0}, s{T0}, s{WL}", f"s_lshl_b32 s{T0}, s{T0}, 4",
      f"s_lshl_b32 s{T1}, s{J}, 1", f"s_add_u32 s{T0}, s{T0}, s{T1}", f"s_add_u32 s{T0}, s{T0}, s{WH}",
      f"s_lshl_b32 s{T0}, s{T0}, 12", f"s_add_u32 s{T0}, s{T0}, {WS_FF}")
    for q in range(4):
        A(f"buffer_store_dwordx4 {v(ACC+4*q,4)}, {v(VL16)}, s[{SWS}:{SWS+3}], s{T0} offen offset:{q*1024}")
    ST.stamp()
    A(f"s_branch {END}")


def gen_role_a(A, END, ST):
    FAIL = END
    VL16, VVO, VT0, VT1, VT2, VIDX = 2, 3, 4, 5, 6, 7
    O, SA, SB_, Q0, Q1, KR, VR = 16, 80, 96, 112, 128, 144, 160
    CT = 192
    KVO, PASS, CNT, SPART, SKF, SVF = 30, 31, 32, 33, 34, 35
    EXV = 36
    S_ = [SA, SB_]
    A(f"s_mov_b32 s{WR}, s{W}", "s_setprio 3",
      f"v_lshlrev_b32 {v(VL16)}, 4, {v(LANE)}",
      f"s_mov_b32 s{EXV}, 0x0000ffff", f"s_mov_b32 s{EXV+1}, 0x0000ffff",
      f"v_mov_b32 {v(VIDX)}, 0xdddddddd")
    A(f"s_lshl_b32 s{T0}, s{G}, 6", f"s_lshl_b32 s{T1}, s{J}, 2", f"s_add_u32 s{T0}, s{T0}, s{T1}",
      f"s_lshl_b32 s{T0}, s{T0}, 10", f"s_add_u32 s{T0}, s{T0}, {WS_QF}", f"s_add_u32 s{T1}, s{T0}, {32*1024}")
    for hh in range(4):
        A(f"buffer_load_dwordx4 {v(Q0+4*hh,4)}, {v(VL16)}, s[{SWS}:{SWS+3}], s{T0} offen offset:{hh*1024}")
    A(f"v_lshrrev_b32 {v(VT0)}, 5, {v(LANE)}", f"v_lshlrev_b32 {v(VVO)}, 8, {v(VT0)}",
      f"v_and_b32 {v(VT0)}, 31, {v(LANE)}", f"v_lshlrev_b32 {v(VT0)}, 4, {v(VT0)}", f"v_add_u32 {v(VVO)}, {v(VVO)}, {v(VT0)}")
    for i in range(32):
        A(f"v_mov_b32 {v(VR+i)}, 0x3f803f80")
    A(f"s_lshl_b32 s{T2s}, s{WR}, 14", f"s_add_u32 s{SKF}, s{T2s}, {WS_KF}", f"s_add_u32 s{SVF}, s{T2s}, {WS_VF}",
      f"s_mov_b32 s{KVO}, 0")
    def kvload(set_):
        A(f"s_add_u32 s{T2s}, s{SKF}, s{KVO}", f"s_add_u32 s{T3}, s{SVF}, s{KVO}",
          f"buffer_load_dwordx4 {v(KR+4*set_,4)}, {v(VL16)}, s[{SWS}:{SWS+3}], s{T2s} offen",
          f"s_mov_b64 exec, s[{EXV}:{EXV+1}]",
          f"buffer_load_dwordx4 {v(VR+8*set_,4)}, {v(VVO)}, s[{SWS}:{SWS+3}], s{T3} offen",
          f"buffer_load_dwordx4 {v(VR+8*set_+4,4)}, {v(VVO)}, s[{SWS}:{SWS+3}], s{T3} offen offset:512",
          "s_mov_b64 exec, -1",
          f"s_add_u32 s{KVO}, s{KVO}, 1024", f"s_and_b32 s{KVO}, s{KVO}, 0x3fff")
    for st in range(3):
        kvload(st)
    for hh in range(4):
        A(f"buffer_load_dwordx4 {v(Q1+4*hh,4)}, {v(VL16)}, s[{SWS}:{SWS+3}], s{T1} offen offset:{hh*1024}")
    KN, VN = CT, CT+2
    A(f"v_lshlrev_b32 {v(VT0)}, 3, {v(LANE)}", f"s_mov_b32 s{T0}, {WS_KN}",
      f"buffer_load_dwordx2 {v(KN,2)}, {v(VT0)}, s[{SWS}:{SWS+3}], s{T0} offen",
      f"buffer_load_dwordx2 {v(VN,2)}, {v(VT0)}, s[{SWS}:{SWS+3}], s{T0} offen offset:{WS_VN-WS_KN}")
    A(f"v_and_b32 {v(VT0)}, 1, {v(LANE)}", f"v_bfe_u32 {v(VT1)}, {v(LANE)}, 1, 1", f"v_lshlrev_b32 {v(VT1)}, 4, {v(VT1)}",
      f"v_add_u32 {v(VT0)}, {v(VT0)}, {v(VT1)}", f"v_lshlrev_b32 {v(VT0)}, 2, {v(VT0)}",
      f"s_lshl_b32 s{T0}, s{G}, 5", f"s_lshl_b32 s{T1}, s{J}, 1", f"s_add_u32 s{T0}, s{T0}, s{T1}",
      f"s_lshl_b32 s{T0}, s{T0}, 2", f"s_add_u32 s{T0}, s{T0}, {WS_QN}",
      f"buffer_load_dword {v(CT+4)}, {v(VT0)}, s[{SWS}:{SWS+3}], s{T0} offen",
      "s_waitcnt vmcnt(0)",
      f"v_max_f32 {v(KN)}, {v(KN)}, {v(KN+1)}", f"v_max_f32 {v(VN)}, {v(VN)}, {v(VN+1)}")
    ROW = ["row_ror:8", "row_ror:4", "row_ror:2", "row_ror:1"]
    for r in (KN, VN, CT+4):
        dpp_reduce(A, "v_max_f32", r, None, ROW)
        swap_reduce(A, "v_max_f32", r, VT0, 16)
        swap_reduce(A, "v_max_f32", r, VT0, 32)
    L_slow = A.newlabel("slow")
    A(f"v_mul_f32 {v(KN)}, {v(KN)}, {v(CT+4)}",
      f"v_mov_b32 {v(VT0)}, {f32bits(T2):#x}", f"v_mov_b32 {v(VT1)}, {f32bits(VMAX):#x}",
      f"v_cmp_le_f32 s[38:39], {v(KN)}, {v(VT0)}", f"v_cmp_le_f32 s[40:41], {v(VN)}, {v(VT1)}", "s_nop 4",
      "s_and_b64 s[38:39], s[38:39], s[40:41]", "s_cmp_eq_u64 s[38:39], exec", f"s_cbranch_scc0 {L_slow}")
    ST.stamp()
    A(f"s_mov_b32 s{PASS}, 0")
    L_pass = A.newlabel("pass")
    A.label(L_pass)
    for i in range(64):
        A(f"v_mov_b32 {v(O+i)}, 0")
    for i in range(8):
        A(f"v_mov_b32 {v(SB_+8+i)}, 0")
    A("s_waitcnt vmcnt(7)")
    A(f"v_mfma_f32_32x32x16_bf16 {v(SA,16)}, {v(KR,4)}, {v(Q0,4)}, 0", "s_nop 15", f"s_mov_b32 s{CNT}, 4")
    L_loop = A.newlabel("aloop")
    A.label(L_loop)
    for n in range(16):
        kt, qi = n // 4, n % 4
        cur, oth = S_[n % 2], S_[(n+1) % 2]
        pk, pq = ((n-1) % 16) // 4, (n-1) % 4
        nk, nq = ((n+1) % 16) // 4, (n+1) % 4
        e = lambda i: f"v_exp_f32 {v(cur+i)}, {v(cur+i)}"
        A(e(0), e(1))
        A(f"v_smfmac_f32_32x32x32_bf16 {v(O+16*pq,16)}, {v(VR+8*pk+4,4)}, {v(oth+8,8)}, {v(VIDX)}")
        if qi == 0:
            kvload((kt+3) % 4)
        A(*[e(i) for i in range(2, 7)])
        if qi == 3:
            A("s_waitcnt vmcnt(6)")
        A(f"v_mfma_f32_32x32x16_bf16 {v(oth,16)}, {v(KR+4*nk,4)}, {v(Q0+4*nq,4)}, 0")
        A(*[e(i) for i in range(7, 12)])
        A(f"v_smfmac_f32_32x32x32_bf16 {v(O+16*qi,16)}, {v(VR+8*kt,4)}, {v(cur,8)}, {v(VIDX)}")
        A(*[e(i) for i in range(12, 16)])
    A(f"s_sub_u32 s{CNT}, s{CNT}, 1", f"s_cmp_lg_u32 s{CNT}, 0", f"s_cbranch_scc1 {L_loop}")
    A("s_nop 1", f"v_smfmac_f32_32x32x32_bf16 {v(O+48,16)}, {v(VR+8*3+4,4)}, {v(SB_+8,8)}, {v(VIDX)}")
    ST.stamp()

    def part_base():
        Lp0, Lpd = A.newlabel("p0"), A.newlabel("pd")
        A(f"s_cmp_eq_u32 s{PASS}, 0", f"s_cbranch_scc1 {Lp0}")
        lds_wait(A, F_G1, 4, VT0, VT1, FAIL)
        A(f"s_mov_b32 s{SPART}, {L_XN}", f"s_branch {Lpd}")
        A.label(Lp0)
        A(f"s_mov_b32 s{SPART}, {L_PART0}")
        A.label(Lpd)

    def store_o(src8):
        for i in range(4):
            A(f"v_cvt_pk_bf16_f32 {v(CT+i)}, {v(src8+2*i)}, {v(src8+2*i+1)}")
        A(f"s_lshl_b32 s{T0}, s{G}, 1", f"s_add_u32 s{T0}, s{T0}, s{PASS}", f"s_lshl_b32 s{T0}, s{T0}, 5",
          f"s_lshl_b32 s{T1}, s{J}, 2", f"s_add_u32 s{T0}, s{T0}, s{T1}", f"s_add_u32 s{T0}, s{T0}, s{WR}",
          f"s_lshl_b32 s{T0}, s{T0}, 10", f"s_add_u32 s{T0}, s{T0}, {WS_OF}",
          f"buffer_store_dwordx4 {v(CT,4)}, {v(VL16)}, s[{SWS}:{SWS+3}], s{T0} offen sc1")

    part_base()
    A(f"s_mul_i32 s{T1}, s{WR}, {PART_W}", f"s_add_u32 s{T1}, s{T1}, s{SPART}",
      f"v_add_u32 {v(VT1)}, s{T1}, {v(VL16)}", f"v_lshlrev_b32 {v(VT2)}, 2, {v(LANE)}", f"v_add_u32 {v(VT2)}, s{T1}, {v(VT2)}",
      "s_nop 7")
    for qi in range(4):
        A(f"ds_write_b128 {v(VT1)}, {v(O+16*qi,4)} offset:{qi*2304}",
          f"ds_write_b128 {v(VT1)}, {v(O+16*qi+4,4)} offset:{qi*2304+1024}",
          f"ds_write_b32 {v(VT2)}, {v(O+16*qi+8)} offset:{qi*2304+2048}")
    A(f"s_lshl_b32 s{T3}, s{PASS}, 2")
    lds_signal(A, F_A0, VT0, VT1, T3)
    lds_wait(A, F_A0, 4, VT0, VT1, FAIL, T3)
    A(f"s_mul_i32 s{T1}, s{WR}, 2304", f"s_add_u32 s{T1}, s{T1}, s{SPART}",
      f"v_add_u32 {v(VT1)}, s{T1}, {v(VL16)}", f"v_lshlrev_b32 {v(VT2)}, 2, {v(LANE)}", f"v_add_u32 {v(VT2)}, s{T1}, {v(VT2)}")
    for x in range(4):
        A(f"ds_read_b128 {v(O+16*x,4)}, {v(VT1)} offset:{x*PART_W}",
          f"ds_read_b128 {v(O+16*x+4,4)}, {v(VT1)} offset:{x*PART_W+1024}",
          f"ds_read_b32 {v(O+16*x+8)}, {v(VT2)} offset:{x*PART_W+2048}")
    for x in range(1, 4):
        A(f"s_waitcnt lgkmcnt({3*(3-x)})")
        for i in range(0, 8, 2):
            A(f"v_pk_add_f32 {v(O+i,2)}, {v(O+i,2)}, {v(O+16*x+i,2)}")
        A(f"v_add_f32 {v(O+8)}, {v(O+8)}, {v(O+16*x+8)}")
    A(f"v_rcp_f32 {v(O+8)}, {v(O+8)}", "s_nop 0")
    for i in range(0, 8, 2):
        A(f"v_pk_mul_f32 {v(O+i,2)}, {v(O+i,2)}, {v(O+8,2)} op_sel_hi:[1,0]")
    store_o(O)
    ST.stamp()
    for i in range(16):
        A(f"v_mov_b32 {v(Q0+i)}, {v(Q1+i)}")
    A(f"s_add_u32 s{PASS}, s{PASS}, 1", f"s_cmp_lt_u32 s{PASS}, 2", f"s_cbranch_scc1 {L_pass}",
      f"s_branch {END}")

    A.label(L_slow)
    M, KQ = CT+8, CT+12
    A(f"s_mov_b32 s{PASS}, 0")
    Lsp = A.newlabel("spass")
    A.label(Lsp)
    part_base()
    PW = PART_W
    A("s_mov_b32 s42, 0", "s_mov_b32 s43, -1")
    for qi in range(4):
        A("s_waitcnt vmcnt(0)", f"v_mov_b32 {v(M)}, 0xff800000", f"s_mov_b32 s{KVO}, 0")
        L1 = A.newlabel("smax")
        A.label(L1)
        A(f"s_add_u32 s{T2s}, s{SKF}, s{KVO}",
          f"buffer_load_dwordx4 {v(KR,4)}, {v(VL16)}, s[{SWS}:{SWS+3}], s{T2s} offen", "s_waitcnt vmcnt(0)",
          f"v_mfma_f32_32x32x16_bf16 {v(SA,16)}, {v(KR,4)}, {v(Q0+4*qi,4)}, 0", "s_nop 15")
        for i in range(0, 16, 2):
            A(f"v_max3_f32 {v(M)}, {v(SA+i)}, {v(SA+i+1)}, {v(M)}")
        A(f"s_add_u32 s{KVO}, s{KVO}, 1024", f"s_cmp_lt_u32 s{KVO}, 0x4000", f"s_cbranch_scc1 {L1}")
        swap_reduce(A, "v_max_f32", M, VT0, 32)
        for i in range(16):
            A(f"v_mov_b32 {v(O+i)}, 0")
        A(f"s_mov_b32 s{KVO}, 0")
        L2 = A.newlabel("spv")
        A.label(L2)
        A(f"s_add_u32 s{T2s}, s{SKF}, s{KVO}", f"s_add_u32 s{T3}, s{SVF}, s{KVO}",
          f"buffer_load_dwordx4 {v(KR,4)}, {v(VL16)}, s[{SWS}:{SWS+3}], s{T2s} offen",
          f"s_mov_b64 exec, s[{EXV}:{EXV+1}]",
          f"buffer_load_dwordx4 {v(VR,4)}, {v(VVO)}, s[{SWS}:{SWS+3}], s{T3} offen",
          f"buffer_load_dwordx4 {v(VR+4,4)}, {v(VVO)}, s[{SWS}:{SWS+3}], s{T3} offen offset:512",
          "s_mov_b64 exec, -1", "s_waitcnt vmcnt(0)",
          f"v_mfma_f32_32x32x16_bf16 {v(SA,16)}, {v(KR,4)}, {v(Q0+4*qi,4)}, 0", "s_nop 15")
        for i in range(16):
            A(f"v_sub_f32 {v(SA+i)}, {v(SA+i)}, {v(M)}")
        for i in range(16):
            A(f"v_exp_f32 {v(SA+i)}, {v(SA+i)}")
        A("s_nop 1",
          f"v_smfmac_f32_32x32x32_bf16 {v(O,16)}, {v(VR,4)}, {v(SA,8)}, {v(VIDX)}",
          f"v_smfmac_f32_32x32x32_bf16 {v(O,16)}, {v(VR+4,4)}, {v(SA+8,8)}, {v(VIDX)}", "s_nop 15",
          f"s_add_u32 s{KVO}, s{KVO}, 1024", f"s_cmp_lt_u32 s{KVO}, 0x4000", f"s_cbranch_scc1 {L2}")
        A(f"s_mul_i32 s{T1}, s{WR}, {PW}", f"s_add_u32 s{T1}, s{T1}, s{SPART}",
          f"v_add_u32 {v(VT1)}, s{T1}, {v(VL16)}", f"v_lshlrev_b32 {v(VT2)}, 2, {v(LANE)}", f"v_add_u32 {v(VT2)}, s{T1}, {v(VT2)}",
          f"v_cndmask_b32 {v(O+9)}, {v(O+8)}, {v(M)}, s[42:43]",
          f"ds_write_b128 {v(VT1)}, {v(O,4)} offset:{qi*2304}",
          f"ds_write_b128 {v(VT1)}, {v(O+4,4)} offset:{qi*2304+1024}",
          f"ds_write_b32 {v(VT2)}, {v(O+9)} offset:{qi*2304+2048}")
    A(f"s_lshl_b32 s{T3}, s{PASS}, 2")
    lds_signal(A, F_A0, VT0, VT1, T3)
    lds_wait(A, F_A0, 4, VT0, VT1, FAIL, T3)
    A(f"s_mul_i32 s{T1}, s{WR}, 2304", f"s_add_u32 s{T1}, s{T1}, s{SPART}",
      f"v_add_u32 {v(VT1)}, s{T1}, {v(VL16)}", f"v_and_b32 {v(VT2)}, 31, {v(LANE)}", f"v_lshlrev_b32 {v(VT2)}, 2, {v(VT2)}",
      f"v_add_u32 {v(VT2)}, s{T1}, {v(VT2)}")
    for x in range(4):
        A(f"ds_read_b128 {v(O+16*x,4)}, {v(VT1)} offset:{x*PW}",
          f"ds_read_b128 {v(O+16*x+4,4)}, {v(VT1)} offset:{x*PW+1024}",
          f"ds_read_b32 {v(O+16*x+8)}, {v(VT2)} offset:{x*PW+2048}",
          f"ds_read_b32 {v(O+16*x+9)}, {v(VT2)} offset:{x*PW+2048+128}")
    A("s_waitcnt lgkmcnt(0)",
      f"v_max3_f32 {v(M)}, {v(O+9)}, {v(O+16+9)}, {v(O+32+9)}", f"v_max_f32 {v(M)}, {v(M)}, {v(O+48+9)}")
    for x in range(4):
        A(f"v_sub_f32 {v(O+16*x+9)}, {v(O+16*x+9)}, {v(M)}", f"v_exp_f32 {v(O+16*x+9)}, {v(O+16*x+9)}", "s_nop 0")
        for i in range(9):
            A(f"v_mul_f32 {v(O+16*x+i)}, {v(O+16*x+i)}, {v(O+16*x+9)}")
    for x in range(1, 4):
        for i in range(9):
            A(f"v_add_f32 {v(O+i)}, {v(O+i)}, {v(O+16*x+i)}")
    A(f"v_rcp_f32 {v(O+8)}, {v(O+8)}", "s_nop 0")
    for i in range(8):
        A(f"v_mul_f32 {v(O+i)}, {v(O+i)}, {v(O+8)}")
    store_o(O)
    for i in range(16):
        A(f"v_mov_b32 {v(Q0+i)}, {v(Q1+i)}")
    A(f"s_add_u32 s{PASS}, s{PASS}, 1", f"s_cmp_lt_u32 s{PASS}, 2", f"s_cbranch_scc1 {Lsp}", f"s_branch {END}")


def gen_k2(A, name="k2_kernel"):
    A.raw(f".globl {name}\n.p2align 8\n.type {name},@function\n{name}:")
    END = f"{name}_end"
    A("s_cmp_ge_u32 s2, 256", f"s_cbranch_scc1 {END}_x")
    ST = Stamps(A, 64, 1)
    ST.stamp(True); ST.stamp()
    A("s_load_dwordx4 s[44:47], s[0:1], 48",
      "s_load_dwordx2 s[48:49], s[0:1], 64",
      "s_load_dwordx2 s[50:51], s[0:1], 88")
    decode_gj(A, 2, G, J, T0)
    A("v_lshrrev_b32 v2, 6, v0", f"v_and_b32 {v(LANE)}, 63, v0", "s_nop 0", f"v_readfirstlane_b32 s{W}, v2")
    A(f"v_lshlrev_b32 v2, 2, {v(LANE)}", f"v_add_u32 v2, {L_FLAG}, v2", "v_mov_b32 v3, 0",
      "s_mov_b64 exec, 0xffff", "ds_write_b32 v2, v3", "s_mov_b64 exec, -1")
    A("s_waitcnt lgkmcnt(0)")
    srd(A, SWS, 50, WS_SIZE)
    srd(A, SWG, 44, D*F*2)
    srd(A, SWU, 46, D*F*2)
    srd(A, SWD, 48, D*F*2)
    A("s_barrier")
    L_g = A.newlabel("roleg")
    A(f"s_cmp_ge_u32 s{W}, 4", f"s_cbranch_scc1 {L_g}")
    n0 = ST.n
    gen_role_a(A, END, ST)
    na = ST.n
    A.label(L_g)
    ST.n = n0
    gen_role_g(A, END, ST)
    A.label(END)
    if DIAG:
        A("s_waitcnt vmcnt(0)")
        ST.n = 10
        ST.stamp(); ST.stamp(True)
        A("s_mov_b64 exec, -1")
        ST.flush(SWS, W, 2, 3, T0, WS_DBG)
    A.label(END + "_x")
    A("s_endpgm")
    return dict(name=name, vgpr=256, sgpr=100, accum=256, lds=K2_LDS, block=512, grid=256)
```

```python
from asmlib import *
from layout import *
from k1 import f32bits, decode_gj, panel_voff, tr_base

K3_LDS = 65536
def gen_k3(A, name="k3_kernel"):
    A.raw(f".globl {name}\n.p2align 8\n.type {name},@function\n{name}:")
    END = f"{name}_end"
    SX, SWO, SWS, SOUT = 4, 8, 12, 16
    G, J, W, T0, T1, T2, WH, WL = 20, 21, 22, 24, 25, 26, 27, 28
    LANE = 1
    A("s_cmp_ge_u32 s2, 256", f"s_cbranch_scc1 {END}_x")
    ST = Stamps(A, 64, 2)
    ST.stamp(True); ST.stamp()
    A("s_load_dwordx2 s[32:33], s[0:1], 0", "s_load_dwordx2 s[34:35], s[0:1], 32",
      "s_load_dwordx2 s[36:37], s[0:1], 72", "s_load_dwordx2 s[38:39], s[0:1], 88")
    decode_gj(A, 2, G, J, T0)
    A("v_lshrrev_b32 v2, 6, v0", f"v_and_b32 {v(LANE)}, 63, v0", "s_nop 0", f"v_readfirstlane_b32 s{W}, v2")
    A("s_waitcnt lgkmcnt(0)")
    srd(A, SX, 32, S*D*2); srd(A, SWO, 34, D*D*2); srd(A, SOUT, 36, S*D*2); srd(A, SWS, 38, WS_SIZE)
    VL16, VP, VA, VX, VT0, VT1, VT2 = 2, 3, 4, 5, 6, 7, 8
    OFR, FF, XR, ACC, AS = 128, 16, 32, 48, 64
    A(f"s_lshr_b32 s{WH}, s{W}, 1", f"s_and_b32 s{WL}, s{W}, 1", f"v_lshlrev_b32 {v(VL16)}, 4, {v(LANE)}")
    panel_voff(A, VP, LANE, VT0, VT1, 2*D)
    A(f"s_lshl_b32 s{T0}, s{J}, 7", f"v_add_u32 {v(VP)}, s{T0}, {v(VP)}",
      f"s_lshl_b32 s{T0}, s{W}, 17", f"s_lshl_b32 s{T2}, s{W}, 14")
    for i in range(16):
        A(f"s_add_u32 m0, s{T2}, {i*1024}", f"s_add_u32 s{T1}, s{T0}, {i*8192}",
          f"buffer_load_dwordx4 {v(VP)}, s[{SWO}:{SWO+3}], s{T1} offen lds")
    A(f"s_lshl_b32 s{T0}, s{G}, 1", f"s_add_u32 s{T0}, s{T0}, s{WL}", f"s_lshl_b32 s{T1}, s{T0}, 15",
      f"s_add_u32 s{T1}, s{T1}, {WS_OF}")
    for st in range(32):
        if st % 4 == 0 and st:
            A(f"s_add_u32 s{T1}, s{T1}, 4096")
        A(f"buffer_load_dwordx4 {v(OFR+4*st,4)}, {v(VL16)}, s[{SWS}:{SWS+3}], s{T1} offen offset:{(st%4)*1024}")
    A(f"s_lshl_b32 s{T1}, s{T0}, 4", f"s_lshl_b32 s{T2}, s{J}, 1", f"s_add_u32 s{T1}, s{T1}, s{T2}", f"s_add_u32 s{T1}, s{T1}, s{WH}",
      f"s_lshl_b32 s{T1}, s{T1}, 12", f"s_add_u32 s{T1}, s{T1}, {WS_FF}")
    for q in range(4):
        A(f"buffer_load_dwordx4 {v(FF+4*q,4)}, {v(VL16)}, s[{SWS}:{SWS+3}], s{T1} offen offset:{q*1024}")
    A(f"s_lshl_b32 s{T0}, s{T0}, 15", f"s_lshl_b32 s{T1}, s{J}, 7", f"s_add_u32 s{T0}, s{T0}, s{T1}",
      f"s_lshl_b32 s{T1}, s{WH}, 6", f"s_add_u32 s{T0}, s{T0}, s{T1}",
      f"v_and_b32 {v(VX)}, 31, {v(LANE)}", f"v_lshlrev_b32 {v(VX)}, 10, {v(VX)}",
      f"v_lshrrev_b32 {v(VT0)}, 5, {v(LANE)}", f"v_lshlrev_b32 {v(VT0)}, 3, {v(VT0)}", f"v_add_u32 {v(VX)}, {v(VX)}, {v(VT0)}",
      f"v_add_u32 {v(VX)}, s{T0}, {v(VX)}")
    for i in range(4):
        A(f"buffer_load_dwordx2 {v(XR+2*i,2)}, {v(VX)}, s[{SX}:{SX+3}], 0 offen offset:{i*16}")
    tr_base(A, VA, LANE, f"s{WH}", 4, VT0, VT1, VT2)
    A("s_waitcnt vmcnt(40)", "s_barrier")
    ST.stamp()
    NS = 4
    def rd(st):
        k = st % NS
        A(f"ds_read_b64_tr_b16 {v(AS+4*k,2)}, {v(VA)} offset:{st*2048}",
          f"ds_read_b64_tr_b16 {v(AS+4*k+2,2)}, {v(VA)} offset:{st*2048+1024}")
    for st in range(NS-1): rd(st)
    for st in range(32):
        if st + NS - 1 < 32: rd(st + NS - 1)
        left = min(NS-1, 31-st)
        A(f"s_waitcnt vmcnt({8 + 31 - st}) lgkmcnt({2*left})")
        k = st % NS
        A(f"v_mfma_f32_32x32x16_bf16 {v(ACC,16)}, {v(AS+4*k,4)}, {v(OFR+4*st,4)}, {'0' if st==0 else v(ACC,16)}")
    ST.stamp()
    A("s_waitcnt vmcnt(0)", "s_mov_b32 s30, 0xffff0000")
    XF = 96
    for i in range(8):
        A(f"v_lshlrev_b32 {v(XF+2*i)}, 16, {v(XR+i)}", f"v_and_b32 {v(XF+2*i+1)}, s30, {v(XR+i)}")
    A("s_nop 7")
    for i in range(0, 16, 2):
        A(f"v_pk_fma_f32 {v(XF+i,2)}, {v(ACC+i,2)}, {v(FF+i,2)}, {v(XF+i,2)}")
    for i in range(8):
        A(f"v_cvt_pk_bf16_f32 {v(XR+i)}, {v(XF+2*i)}, {v(XF+2*i+1)}")
    for i in range(4):
        A(f"buffer_store_dwordx2 {v(XR+2*i,2)}, {v(VX)}, s[{SOUT}:{SOUT+3}], 0 offen offset:{i*16}")
    A.label(END)
    if DIAG:
        A("s_waitcnt vmcnt(0)")
        ST.n = 10
        ST.stamp(); ST.stamp(True)
        ST.flush(SWS, W, 2, 3, T0, WS_DBG)
    A.label(END + "_x")
    A("s_endpgm")
    return dict(name=name, vgpr=256, sgpr=100, accum=256, lds=K3_LDS, block=256, grid=256)
```

```python
S, D, H, DH, F = 2048, 512, 32, 16, 1792
WS_XN   = 0x000000
WS_QF   = 0x200000
WS_KF   = 0x400000
WS_VF   = 0x410000
WS_KN   = 0x420000
WS_VN   = 0x420200
WS_QN   = 0x420400
WS_FLAG = 0x430000
WS_KV   = 0x440000
WS_HF   = 0x500000
WS_OF   = 0xC00000
WS_FF   = 0xE00000
WS_SIZE = 268435456
QSCALE = 0.25 * 1.4426950408889634
WS_DBG  = 0x1200000
```

```python
import sys, os
sys.path.insert(0, os.path.dirname(os.path.abspath(__file__)))
from asmlib import *
from layout import *
import k1

HEADER = open(os.path.join(os.path.dirname(os.path.abspath(__file__)), "header.txt")).read()

def build(kernels, launches):
    A = Asm()
    infos = {}
    for fn in kernels:
        info = fn(A)
        infos[info["name"]] = info
    out = HEADER
    for n in launches:
        i = infos[n]
        out += f"; @launch kernel={n} grid=({i['grid']},1,1) block=({i['block']},1,1) lds={i['lds']}\n"
    out += '.amdgcn_target "amdgcn-amd-amdhsa--gfx950"\n.text\n'
    out += A.text()
    out += '.section .rodata,"a"\n'
    for n, i in infos.items():
        out += kernel_desc(n, i["vgpr"], i["sgpr"], i["accum"])
    return out, infos

if __name__ == "__main__":
    ks = [k1.gen_k1]
    names = ["k1_kernel"]
    try:
        import k2
        ks.append(k2.gen_k2); names.append("k2_kernel")
        if os.path.exists(os.path.join(os.path.dirname(os.path.abspath(__file__)), "k3.py")):
            import k3
            ks.append(k3.gen_k3); names.append("k3_kernel")
    except ImportError as e:
        print("partial build:", e)
    txt, infos = build(ks, names)
    dst = sys.argv[1] if len(sys.argv) > 1 else "out.s"
    open(dst, "w").write(txt)
    print("wrote", dst, len(txt), "bytes", {k: (i["lds"], i["vgpr"]) for k, i in infos.items()})
```

```python
import os
from asmlib import *
from layout import *
from k1 import f32bits, decode_gj, panel_voff, tr_base

L_XN = 0
L_PART0 = 65536
PART_W = 4 * 2304
L_RING = L_PART0 + 4 * PART_W
RING = 14336
L_FLAG = L_RING + 4 * RING
K2_LDS = L_FLAG + 64
F_XN, F_G1, F_RED, F_A0 = 0, 4, 8, 12

LOG2E = 1.4426950408889634
T2 = 3600.0
VMAX = float(2**40)
SPIN_MAX = 1 << 22

SWS, SWG, SWU, SWD = 4, 8, 12, 16
G, J, W, WR = 20, 21, 22, 23
T0, T1, T2s, T3, T4 = 24, 25, 26, 27, 28
SPIN = 29
LANE = 1

def lds_signal(A, flag_off, vaddr, vone, extra_s=None):
    A(f"v_mov_b32 {v(vaddr)}, {L_FLAG + flag_off}")
    if extra_s is not None:
        A(f"v_add_u32 {v(vaddr)}, s{extra_s}, {v(vaddr)}")
    A(f"v_mov_b32 {v(vone)}, 1", "s_mov_b64 exec, 1", f"ds_add_u32 {v(vaddr)}, {v(vone)}", "s_mov_b64 exec, -1")

def lds_wait(A, flag_off, count, vaddr, vtmp, fail, extra_s=None):
    L = A.newlabel("ldsw")
    Ld = A.newlabel("ldsd")
    A(f"v_mov_b32 {v(vaddr)}, {L_FLAG + flag_off}")
    if extra_s is not None:
        A(f"v_add_u32 {v(vaddr)}, s{extra_s}, {v(vaddr)}")
    A(f"s_mov_b32 s{SPIN}, {SPIN_MAX}")
    A.label(L)
    A(f"ds_read_b32 {v(vtmp)}, {v(vaddr)}", "s_waitcnt lgkmcnt(0)",
      f"v_readfirstlane_b32 s{T0}, {v(vtmp)}", "s_nop 3",
      f"s_cmp_ge_u32 s{T0}, {count}", f"s_cbranch_scc1 {Ld}",
      f"s_sub_u32 s{SPIN}, s{SPIN}, 1", f"s_cmp_eq_u32 s{SPIN}, 0", f"s_cbranch_scc1 {fail}",
      "s_sleep 1", f"s_branch {L}")
    A.label(Ld)

def silu_block(A, dst, src, n, tmp, slog):
    raise NotImplementedError

def gen_role_g(A, END, ST):
    FAIL = END
    VL16, VG1, VA0, VA1, VAB0, VAB1, VB, VT0, VT1, VT2 = 2, 3, 4, 5, 6, 7, 8, 9, 10, 11
    RB = 30
    SLOT, SO0, SO1, KS = 31, 32, 33, 34
    SLOG = 36
    CNT = 38
    ACC = 128
    A(f"s_sub_u32 s{WR}, s{W}, 4",
      f"s_mul_i32 s{RB}, s{WR}, {RING}", f"s_add_u32 s{RB}, s{RB}, {L_RING}",
      f"v_lshlrev_b32 {v(VL16)}, 4, {v(LANE)}",
      f"s_mov_b32 s{SLOG}, {f32bits(-LOG2E):#x}")
    L_g2 = A.newlabel("gemm2")
    L_skip1 = A.newlabel("skip1")
    if os.environ.get("NO_G"):
        lds_signal(A, F_G1, VT0, VT1)
        A(f"s_branch {END}")
    A(f"s_cmp_eq_u32 s{J}, 7", f"s_cbranch_scc1 {L_skip1}")
    A(f"s_lshl_b32 s{T0}, s{G}, 16", f"s_lshl_b32 s{T1}, s{WR}, 14", f"s_add_u32 s{T0}, s{T0}, s{T1}",
      f"s_add_u32 s{T0}, s{T0}, {WS_XN}")
    for i in range(16):
        A(f"s_add_u32 m0, s{T1}, {L_XN + i*1024}", f"s_add_u32 s{T2s}, s{T0}, {i*1024}",
          f"buffer_load_dwordx4 {v(VL16)}, s[{SWS}:{SWS+3}], s{T2s} offen lds")
    panel_voff(A, VG1, LANE, VT0, VT1, 2*F)
    A(f"s_lshl_b32 s{T0}, s{J}, 9", f"s_lshl_b32 s{T1}, s{WR}, 7", f"s_add_u32 s{T0}, s{T0}, s{T1}",
      f"v_add_u32 {v(VG1)}, s{T0}, {v(VG1)}")
    NST = 3
    def dma1(slot_s, slot_imm, so0, so1):
        for mat, sr in ((0, SWG), (1, SWU)):
            for half, so in ((0, so0), (1, so1)):
                off = mat*2048 + half*1024
                if slot_s is None:
                    A(f"s_add_u32 m0, s{RB}, {slot_imm + off}")
                else:
                    A(f"s_add_u32 m0, s{slot_s}, {off}")
                A("s_nop 0", f"buffer_load_dwordx4 {v(VG1)}, s[{sr}:{sr+3}], s{so} offen lds")
    for st in range(NST):
        A(f"s_mov_b32 s{SO0}, {16*st*2*F}", f"s_mov_b32 s{SO1}, {(16*st+8)*2*F}")
        dma1(None, st*4096, SO0, SO1)
    tr_base(A, VAB0, LANE, 0, 8, VT0, VT1, VT2)
    tr_base(A, VAB1, LANE, 1, 8, VT0, VT1, VT2)
    A(f"v_add_u32 {v(VAB0)}, s{RB}, {v(VAB0)}", f"v_add_u32 {v(VAB1)}, s{RB}, {v(VAB1)}",
      f"v_mov_b32 {v(VB)}, {v(VL16)}")
    for i in range(128):
        A(f"v_mov_b32 {v(ACC+i)}, 0")
    A(f"s_waitcnt vmcnt({4*NST})")
    lds_signal(A, F_XN, VT0, VT1)
    lds_wait(A, F_XN, 4, VT0, VT1, FAIL)
    ST.stamp()
    AS, BS = 64, 96
    def areg(set_, mat, un): return AS + 16*set_ + 4*(mat*2+un)
    def breg(set_, tt): return BS + 8*set_ + 4*tt
    def acc(mat, un, tt): return ACC + 16*((mat*2+un)*2+tt)
    def reads(set_):
        L = []
        for mat in range(2):
            for un in range(2):
                va = VA0 if un == 0 else VA1
                r = areg(set_, mat, un)
                L.append(f"ds_read_b64_tr_b16 {v(r,2)}, {v(va)} offset:{mat*2048}")
                L.append(f"ds_read_b64_tr_b16 {v(r+2,2)}, {v(va)} offset:{mat*2048+512}")
        Lb = [f"ds_read_b128 {v(breg(set_,tt),4)}, {v(VB)} offset:{L_XN + tt*32768}" for tt in range(2)]
        return Lb[:1] + L[:4] + Lb[1:] + L[4:]
    A(f"s_waitcnt vmcnt({4*(NST-1)})",
      f"v_mov_b32 {v(VA0)}, {v(VAB0)}", f"v_mov_b32 {v(VA1)}, {v(VAB1)}")
    A(*reads(0))
    A(f"s_mov_b32 s{SLOT}, 0", f"s_mov_b32 s{KS}, {NST}", f"s_mov_b32 s{CNT}, 16")
    L1 = A.newlabel("g1loop")
    A.label(L1)
    for par in range(2):
        mf = []
        for un in range(2):
            for mat in range(2):
                for tt in range(2):
                    mf.append(f"v_mfma_f32_32x32x16_bf16 {v(acc(mat,un,tt),16)}, {v(areg(par,mat,un),4)}, {v(breg(par,tt),4)}, {v(acc(mat,un,tt),16)}")
        rd = reads(1-par)
        A("s_waitcnt lgkmcnt(0)")
        A(mf[0])
        A(f"s_min_u32 s{T0}, s{KS}, 31", f"s_mul_i32 s{SO0}, s{T0}, {16*2*F}", f"s_add_u32 s{SO1}, s{SO0}, {8*2*F}",
          f"s_add_u32 s{T1}, s{RB}, s{SLOT}")
        dma1(T1, 0, SO0, SO1)
        A(mf[1])
        A(f"s_add_u32 s{SLOT}, s{SLOT}, 4096", f"s_cmp_eq_u32 s{SLOT}, {NST*4096}", f"s_cselect_b32 s{SLOT}, 0, s{SLOT}",
          f"s_add_u32 s{KS}, s{KS}, 1",
          f"v_add_u32 {v(VA0)}, s{SLOT}, {v(VAB0)}", f"v_add_u32 {v(VA1)}, s{SLOT}, {v(VAB1)}",
          f"v_add_u32 {v(VB)}, 1024, {v(VB)}",
          f"s_waitcnt vmcnt({4*(NST-1)})")
        A(mf[2], *rd[0:3])
        A(mf[3], *rd[3:6])
        A(mf[4], *rd[6:8])
        A(mf[5], *rd[8:10])
        A(mf[6], mf[7])
    A(f"s_sub_u32 s{CNT}, s{CNT}, 1", f"s_cmp_lg_u32 s{CNT}, 0", f"s_cbranch_scc1 {L1}")
    A("s_waitcnt lgkmcnt(0)")
    lds_signal(A, F_G1, VT0, VT1)
    ST.stamp()
    A("s_nop 15")
    TT_, RR = 64, 80
    for un in range(2):
        for tt in range(2):
            g_, u_ = acc(0, un, tt), acc(1, un, tt)
            for i in range(0, 16, 2):
                A(f"v_pk_mul_f32 {v(TT_+i,2)}, {v(g_+i,2)}, s[{SLOG}:{SLOG+1}] op_sel_hi:[1,0]")
            for i in range(16):
                A(f"v_exp_f32 {v(TT_+i)}, {v(TT_+i)}")
            for i in range(0, 16, 2):
                A(f"v_pk_mul_f32 {v(g_+i,2)}, {v(g_+i,2)}, {v(u_+i,2)}")
            for i in range(0, 16, 2):
                A(f"v_pk_add_f32 {v(TT_+i,2)}, {v(TT_+i,2)}, 1.0 op_sel_hi:[1,0]")
            for i in range(16):
                A(f"v_rcp_f32 {v(TT_+i)}, {v(TT_+i)}")
            pk = RR + 8*((un*2+tt) % 2)
            for i in range(0, 16, 2):
                A(f"v_pk_mul_f32 {v(g_+i,2)}, {v(g_+i,2)}, {v(TT_+i,2)}")
            for i in range(8):
                A(f"v_cvt_pk_bf16_f32 {v(pk+i)}, {v(g_+2*i)}, {v(g_+2*i+1)}")
            A(f"s_lshl_b32 s{T0}, s{G}, 1", f"s_add_u32 s{T0}, s{T0}, {tt}", f"s_mul_i32 s{T0}, s{T0}, 112",
              f"s_lshl_b32 s{T1}, s{J}, 4", f"s_add_u32 s{T0}, s{T0}, s{T1}",
              f"s_lshl_b32 s{T1}, s{WR}, 2", f"s_add_u32 s{T0}, s{T0}, s{T1}", f"s_add_u32 s{T0}, s{T0}, {2*un}",
              f"s_lshl_b32 s{T0}, s{T0}, 10", f"s_add_u32 s{T0}, s{T0}, {WS_HF}",
              f"buffer_store_dwordx4 {v(pk,4)}, {v(VL16)}, s[{SWS}:{SWS+3}], s{T0} offen sc1",
              f"buffer_store_dwordx4 {v(pk+4,4)}, {v(VL16)}, s[{SWS}:{SWS+3}], s{T0} offen offset:1024 sc1")
    A("s_waitcnt vmcnt(0)")
    A(f"s_lshl_b32 s{T0}, s{G}, 8", f"s_lshl_b32 s{T1}, s{J}, 4", f"s_add_u32 s{T0}, s{T0}, s{T1}",
      f"s_lshl_b32 s{T1}, s{WR}, 2", f"s_add_u32 s{T0}, s{T0}, s{T1}", f"s_add_u32 s{T0}, s{T0}, {WS_FLAG}",
      f"v_mov_b32 {v(VT0)}, 0", f"v_mov_b32 {v(VT1)}, 1", "s_mov_b64 exec, 1",
      f"buffer_store_dword {v(VT1)}, {v(VT0)}, s[{SWS}:{SWS+3}], s{T0} offen sc1",
      "s_mov_b64 exec, -1", f"s_branch {L_g2}")
    A.label(L_skip1)
    lds_signal(A, F_G1, VT0, VT1)
    if DIAG:
        ST.n -= 2; ST.stamp(); ST.stamp()
    A.label(L_g2)
    ST.stamp()
    DP = 4
    A2, B2 = 64, 96
    WH, WL, SK, SB0, SB1 = 39, 40, 41, 42, 43
    A(f"s_lshr_b32 s{WH}, s{WR}, 1", f"s_and_b32 s{WL}, s{WR}, 1")
    panel_voff(A, VG1, LANE, VT0, VT1, 2*D)
    A(f"s_lshl_b32 s{T0}, s{J}, 7", f"v_add_u32 {v(VG1)}, s{T0}, {v(VG1)}")
    tr_base(A, VAB0, LANE, f"s{WH}", 4, VT0, VT1, VT2)
    A(f"s_xor_b32 s{T0}, s{WH}, 1")
    tr_base(A, VAB1, LANE, f"s{T0}", 4, VT0, VT1, VT2)
    A(f"v_add_u32 {v(VAB0)}, s{RB}, {v(VAB0)}", f"v_add_u32 {v(VAB1)}, s{RB}, {v(VAB1)}")
    A(f"s_mul_i32 s{SK}, s{WR}, {28*16*2*D}",
      f"s_lshl_b32 s{T0}, s{G}, 1", f"s_add_u32 s{T0}, s{T0}, s{WL}", f"s_mul_i32 s{SB0}, s{T0}, {112*1024}",
      f"s_xor_b32 s{T0}, s{T0}, 1", f"s_mul_i32 s{SB1}, s{T0}, {112*1024}",
      f"s_mul_i32 s{T0}, s{WR}, {28*1024}", f"s_add_u32 s{T0}, s{T0}, {WS_HF}",
      f"s_add_u32 s{SB0}, s{SB0}, s{T0}", f"s_add_u32 s{SB1}, s{SB1}, s{T0}")
    def wdma(slot, rel):
        for half in range(2):
            A(f"s_add_u32 m0, s{RB}, {slot*2048 + half*1024}",
              f"s_add_u32 s{T0}, s{SK}, {(rel*16 + half*8)*2*D}",
              f"buffer_load_dwordx4 {v(VG1)}, s[{SWD}:{SWD+3}], s{T0} offen lds")
    def bload(slot, rel):
        for b, sb in ((0, SB0), (1, SB1)):
            A(f"s_add_u32 s{T0}, s{sb}, {rel*1024}",
              f"buffer_load_dwordx4 {v(B2+8*slot+4*b,4)}, {v(VL16)}, s[{SWS}:{SWS+3}], s{T0} offen sc1")
    def areads(st_set):
        L = []
        for aa, va in ((0, VAB0), (1, VAB1)):
            r = A2 + 8*st_set + 4*aa
            L.append(f"ds_read_b64_tr_b16 {v(r,2)}, {v(va)} offset:{st_set*2048}")
            L.append(f"ds_read_b64_tr_b16 {v(r+2,2)}, {v(va)} offset:{st_set*2048+1024}")
        return L
    A("s_waitcnt vmcnt(0)")
    for st in range(DP):
        wdma(st, st)
    for i in range(64):
        A(f"v_mov_b32 {v(ACC+i)}, 0")
    Lp, Lpd = A.newlabel("hpoll"), A.newlabel("hpolld")
    A(f"s_lshl_b32 s{T1}, s{G}, 8", f"s_mul_i32 s{T2s}, s{WR}, 28", f"s_add_u32 s{T1}, s{T1}, s{T2s}",
      f"s_add_u32 s{T1}, s{T1}, {WS_FLAG}",
      f"v_min_u32 {v(VT0)}, 6, {v(LANE)}", f"v_lshlrev_b32 {v(VT0)}, 2, {v(VT0)}",
      f"s_mov_b32 s{SPIN}, {SPIN_MAX}")
    A.label(Lp)
    A(f"buffer_load_dword {v(VT1)}, {v(VT0)}, s[{SWS}:{SWS+3}], s{T1} offen sc1", "s_waitcnt vmcnt(0)",
      f"v_cmp_eq_u32 vcc, 1, {v(VT1)}", "s_nop 4",
      "s_cmp_eq_u64 vcc, exec", f"s_cbranch_scc1 {Lpd}",
      f"s_sub_u32 s{SPIN}, s{SPIN}, 1", f"s_cmp_eq_u32 s{SPIN}, 0", f"s_cbranch_scc1 {FAIL}",
      "s_sleep 2", f"s_branch {Lp}")
    A.label(Lpd)
    ST.stamp()
    for st in range(DP):
        bload(st, st)
    A(*areads(0))
    A(f"s_waitcnt vmcnt({2*(DP-1)})")
    A(f"s_mov_b32 s{CNT}, {28//DP}")
    L2 = A.newlabel("g2loop")
    A.label(L2)
    for k in range(DP):
        nxt = (k+1) % DP
        ar = lambda aa: v(A2 + 8*k + 4*aa, 4)
        br = lambda b: v(B2 + 8*k + 4*b, 4)
        ac = lambda aa, b: v(ACC + 16*(2*aa+b), 16)
        mf = [f"v_mfma_f32_32x32x16_bf16 {ac(aa,b)}, {ar(aa)}, {br(b)}, {ac(aa,b)}" for aa in range(2) for b in range(2)]
        A(f"s_waitcnt vmcnt({4*(DP-2)}) lgkmcnt(0)")
        A(mf[0])
        A(*areads(nxt))
        A(mf[1], mf[2], mf[3])
        A(f"s_cmp_gt_u32 s{CNT}, 1", f"s_cselect_b32 s{T1}, {DP*1024}, 0", f"s_cselect_b32 s{T2s}, {DP*16*2*D}, 0")
        for half in range(2):
            A(f"s_add_u32 m0, s{RB}, {k*2048 + half*1024}",
              f"s_add_u32 s{T0}, s{SK}, s{T2s}", f"s_add_u32 s{T0}, s{T0}, {(k*16 + half*8)*2*D}",
              f"buffer_load_dwordx4 {v(VG1)}, s[{SWD}:{SWD+3}], s{T0} offen lds")
        for b, sb in ((0, SB0), (1, SB1)):
            A(f"s_add_u32 s{T0}, s{sb}, s{T1}", f"s_add_u32 s{T0}, s{T0}, {k*1024}",
              f"buffer_load_dwordx4 {v(B2+8*k+4*b,4)}, {v(VL16)}, s[{SWS}:{SWS+3}], s{T0} offen sc1")
    A(f"s_add_u32 s{SK}, s{SK}, {DP*16*2*D}", f"s_add_u32 s{SB0}, s{SB0}, {DP*1024}", f"s_add_u32 s{SB1}, s{SB1}, {DP*1024}",
      f"s_sub_u32 s{CNT}, s{CNT}, 1", f"s_cmp_lg_u32 s{CNT}, 0", f"s_cbranch_scc1 {L2}")
    A("s_waitcnt vmcnt(0) lgkmcnt(0)")
    ST.stamp()
    A(f"v_add_u32 {v(VT2)}, s{RB}, {v(VL16)}", "s_nop 7")
    for z in range(1, 4):
        for q in range(4):
            A(f"ds_write_b128 {v(VT2)}, {v(ACC+16*z+4*q,4)} offset:{(z-1)*4096 + q*1024}")
    lds_signal(A, F_RED, VT0, VT1)
    lds_wait(A, F_RED, 4, VT0, VT1, FAIL)
    for z in range(1, 4):
        A(f"s_xor_b32 s{T0}, s{WR}, {z}", f"s_mul_i32 s{T0}, s{T0}, {RING}", f"s_add_u32 s{T0}, s{T0}, {L_RING + (z-1)*4096}",
          f"v_add_u32 {v(VT2)}, s{T0}, {v(VL16)}")
        for q in range(4):
            A(f"ds_read_b128 {v(64+16*(z-1)+4*q,4)}, {v(VT2)} offset:{q*1024}")
    for z in range(1, 4):
        A(f"s_waitcnt lgkmcnt({4*(3-z)})")
        for i in range(0, 16, 2):
            A(f"v_pk_add_f32 {v(ACC+i,2)}, {v(ACC+i,2)}, {v(64+16*(z-1)+i,2)}")
    for i in range(0, 16, 2):
        A(f"v_pk_mul_f32 {v(64+i,2)}, {v(ACC+i,2)}, s[{SLOG}:{SLOG+1}] op_sel_hi:[1,0]")
    for i in range(16):
        A(f"v_exp_f32 {v(64+i)}, {v(64+i)}")
    A("s_nop 0")
    for i in range(0, 16, 2):
        A(f"v_pk_add_f32 {v(64+i,2)}, {v(64+i,2)}, 1.0 op_sel_hi:[1,0]")
    for i in range(16):
        A(f"v_rcp_f32 {v(64+i)}, {v(64+i)}")
    A("s_nop 0")
    for i in range(0, 16, 2):
        A(f"v_pk_mul_f32 {v(ACC+i,2)}, {v(ACC+i,2)}, {v(64+i,2)}")
    A(f"s_lshl_b32 s{T0}, s{G}, 1", f"s_add_u32 s{T0}, s{T0}, s{WL}", f"s_lshl_b32 s{T0}, s{T0}, 4",
      f"s_lshl_b32 s{T1}, s{J}, 1", f"s_add_u32 s{T0}, s{T0}, s{T1}", f"s_add_u32 s{T0}, s{T0}, s{WH}",
      f"s_lshl_b32 s{T0}, s{T0}, 12", f"s_add_u32 s{T0}, s{T0}, {WS_FF}")
    for q in range(4):
        A(f"buffer_store_dwordx4 {v(ACC+4*q,4)}, {v(VL16)}, s[{SWS}:{SWS+3}], s{T0} offen offset:{q*1024}")
    ST.stamp()
    A(f"s_branch {END}")


def gen_role_a(A, END, ST):
    FAIL = END
    VL16, VVO, VT0, VT1, VT2, VIDX = 2, 3, 4, 5, 6, 7
    O, SA, SB_, Q0, Q1, KR, VR = 16, 80, 96, 112, 128, 144, 160
    CT = 192
    KVO, PASS, CNT, SPART, SKF, SVF = 30, 31, 32, 33, 34, 35
    EXV = 36
    S_ = [SA, SB_]
    if os.environ.get("NO_A"):
        A(f"s_branch {END}")
    A(f"s_mov_b32 s{WR}, s{W}", f"s_setprio {os.environ.get('APRIO','3')}",
      f"v_lshlrev_b32 {v(VL16)}, 4, {v(LANE)}",
      f"s_mov_b32 s{EXV}, 0x0000ffff", f"s_mov_b32 s{EXV+1}, 0x0000ffff",
      f"v_mov_b32 {v(VIDX)}, 0xdddddddd")
    A(f"s_lshl_b32 s{T0}, s{G}, 6", f"s_lshl_b32 s{T1}, s{J}, 2", f"s_add_u32 s{T0}, s{T0}, s{T1}",
      f"s_lshl_b32 s{T0}, s{T0}, 10", f"s_add_u32 s{T0}, s{T0}, {WS_QF}", f"s_add_u32 s{T1}, s{T0}, {32*1024}")
    for hh in range(4):
        A(f"buffer_load_dwordx4 {v(Q0+4*hh,4)}, {v(VL16)}, s[{SWS}:{SWS+3}], s{T0} offen offset:{hh*1024}")
    A(f"v_lshrrev_b32 {v(VT0)}, 5, {v(LANE)}", f"v_lshlrev_b32 {v(VVO)}, 8, {v(VT0)}",
      f"v_and_b32 {v(VT0)}, 31, {v(LANE)}", f"v_lshlrev_b32 {v(VT0)}, 4, {v(VT0)}", f"v_add_u32 {v(VVO)}, {v(VVO)}, {v(VT0)}")
    for i in range(32):
        A(f"v_mov_b32 {v(VR+i)}, 0x3f803f80")
    A(f"s_lshl_b32 s{T2s}, s{WR}, 14", f"s_add_u32 s{SKF}, s{T2s}, {WS_KF}", f"s_add_u32 s{SVF}, s{T2s}, {WS_VF}",
      f"s_mov_b32 s{KVO}, 0")
    def kvload(set_):
        A(f"s_add_u32 s{T2s}, s{SKF}, s{KVO}", f"s_add_u32 s{T3}, s{SVF}, s{KVO}",
          f"buffer_load_dwordx4 {v(KR+4*set_,4)}, {v(VL16)}, s[{SWS}:{SWS+3}], s{T2s} offen",
          f"s_mov_b64 exec, s[{EXV}:{EXV+1}]",
          f"buffer_load_dwordx4 {v(VR+8*set_,4)}, {v(VVO)}, s[{SWS}:{SWS+3}], s{T3} offen",
          f"buffer_load_dwordx4 {v(VR+8*set_+4,4)}, {v(VVO)}, s[{SWS}:{SWS+3}], s{T3} offen offset:512",
          "s_mov_b64 exec, -1",
          f"s_add_u32 s{KVO}, s{KVO}, 1024", f"s_and_b32 s{KVO}, s{KVO}, 0x3fff")
    for st in range(3):
        kvload(st)
    for hh in range(4):
        A(f"buffer_load_dwordx4 {v(Q1+4*hh,4)}, {v(VL16)}, s[{SWS}:{SWS+3}], s{T1} offen offset:{hh*1024}")
    KN, VN = CT, CT+2
    A(f"v_lshlrev_b32 {v(VT0)}, 3, {v(LANE)}", f"s_mov_b32 s{T0}, {WS_KN}",
      f"buffer_load_dwordx2 {v(KN,2)}, {v(VT0)}, s[{SWS}:{SWS+3}], s{T0} offen",
      f"buffer_load_dwordx2 {v(VN,2)}, {v(VT0)}, s[{SWS}:{SWS+3}], s{T0} offen offset:{WS_VN-WS_KN}")
    A(f"v_and_b32 {v(VT0)}, 1, {v(LANE)}", f"v_bfe_u32 {v(VT1)}, {v(LANE)}, 1, 1", f"v_lshlrev_b32 {v(VT1)}, 4, {v(VT1)}",
      f"v_add_u32 {v(VT0)}, {v(VT0)}, {v(VT1)}", f"v_lshlrev_b32 {v(VT0)}, 2, {v(VT0)}",
      f"s_lshl_b32 s{T0}, s{G}, 5", f"s_lshl_b32 s{T1}, s{J}, 1", f"s_add_u32 s{T0}, s{T0}, s{T1}",
      f"s_lshl_b32 s{T0}, s{T0}, 2", f"s_add_u32 s{T0}, s{T0}, {WS_QN}",
      f"buffer_load_dword {v(CT+4)}, {v(VT0)}, s[{SWS}:{SWS+3}], s{T0} offen",
      "s_waitcnt vmcnt(0)",
      f"v_max_f32 {v(KN)}, {v(KN)}, {v(KN+1)}", f"v_max_f32 {v(VN)}, {v(VN)}, {v(VN+1)}")
    ROW = ["row_ror:8", "row_ror:4", "row_ror:2", "row_ror:1"]
    for r in (KN, VN, CT+4):
        dpp_reduce(A, "v_max_f32", r, None, ROW)
        swap_reduce(A, "v_max_f32", r, VT0, 16)
        swap_reduce(A, "v_max_f32", r, VT0, 32)
    L_slow = A.newlabel("slow")
    A(f"v_mul_f32 {v(KN)}, {v(KN)}, {v(CT+4)}",
      f"v_mov_b32 {v(VT0)}, {f32bits(T2):#x}", f"v_mov_b32 {v(VT1)}, {f32bits(VMAX):#x}",
      f"v_cmp_le_f32 s[38:39], {v(KN)}, {v(VT0)}", f"v_cmp_le_f32 s[40:41], {v(VN)}, {v(VT1)}", "s_nop 4",
      "s_and_b64 s[38:39], s[38:39], s[40:41]", "s_cmp_eq_u64 s[38:39], exec", f"s_cbranch_scc0 {L_slow}")
    ST.stamp()
    A(f"s_mov_b32 s{PASS}, 0")
    L_pass = A.newlabel("pass")
    A.label(L_pass)
    for i in range(64):
        A(f"v_mov_b32 {v(O+i)}, 0")
    for i in range(8):
        A(f"v_mov_b32 {v(SB_+8+i)}, 0")
    A("s_waitcnt vmcnt(7)")
    A(f"v_mfma_f32_32x32x16_bf16 {v(SA,16)}, {v(KR,4)}, {v(Q0,4)}, 0", "s_nop 15", f"s_mov_b32 s{CNT}, 4")
    L_loop = A.newlabel("aloop")
    A.label(L_loop)
    for n in range(16):
        kt, qi = n // 4, n % 4
        cur, oth = S_[n % 2], S_[(n+1) % 2]
        pk, pq = ((n-1) % 16) // 4, (n-1) % 4
        nk, nq = ((n+1) % 16) // 4, (n+1) % 4
        e = lambda i: f"v_exp_f32 {v(cur+i)}, {v(cur+i)}"
        A(e(0), e(1))
        A(f"v_smfmac_f32_32x32x32_bf16 {v(O+16*pq,16)}, {v(VR+8*pk+4,4)}, {v(oth+8,8)}, {v(VIDX)}")
        if qi == 0:
            kvload((kt+3) % 4)
        A(*[e(i) for i in range(2, 7)])
        if qi == 3:
            A("s_waitcnt vmcnt(6)")
        A(f"v_mfma_f32_32x32x16_bf16 {v(oth,16)}, {v(KR+4*nk,4)}, {v(Q0+4*nq,4)}, 0")
        A(*[e(i) for i in range(7, 12)])
        A(f"v_smfmac_f32_32x32x32_bf16 {v(O+16*qi,16)}, {v(VR+8*kt,4)}, {v(cur,8)}, {v(VIDX)}")
        A(*[e(i) for i in range(12, 16)])
    A(f"s_sub_u32 s{CNT}, s{CNT}, 1", f"s_cmp_lg_u32 s{CNT}, 0", f"s_cbranch_scc1 {L_loop}")
    A("s_nop 1", f"v_smfmac_f32_32x32x32_bf16 {v(O+48,16)}, {v(VR+8*3+4,4)}, {v(SB_+8,8)}, {v(VIDX)}")
    ST.stamp()

    def part_base():
        Lp0, Lpd = A.newlabel("p0"), A.newlabel("pd")
        A(f"s_cmp_eq_u32 s{PASS}, 0", f"s_cbranch_scc1 {Lp0}")
        lds_wait(A, F_G1, 4, VT0, VT1, FAIL)
        A(f"s_mov_b32 s{SPART}, {L_XN}", f"s_branch {Lpd}")
        A.label(Lp0)
        A(f"s_mov_b32 s{SPART}, {L_PART0}")
        A.label(Lpd)

    def store_o(src8):
        for i in range(4):
            A(f"v_cvt_pk_bf16_f32 {v(CT+i)}, {v(src8+2*i)}, {v(src8+2*i+1)}")
        A(f"s_lshl_b32 s{T0}, s{G}, 1", f"s_add_u32 s{T0}, s{T0}, s{PASS}", f"s_lshl_b32 s{T0}, s{T0}, 5",
          f"s_lshl_b32 s{T1}, s{J}, 2", f"s_add_u32 s{T0}, s{T0}, s{T1}", f"s_add_u32 s{T0}, s{T0}, s{WR}",
          f"s_lshl_b32 s{T0}, s{T0}, 10", f"s_add_u32 s{T0}, s{T0}, {WS_OF}",
          f"buffer_store_dwordx4 {v(CT,4)}, {v(VL16)}, s[{SWS}:{SWS+3}], s{T0} offen sc1")

    part_base()
    A(f"s_mul_i32 s{T1}, s{WR}, {PART_W}", f"s_add_u32 s{T1}, s{T1}, s{SPART}",
      f"v_add_u32 {v(VT1)}, s{T1}, {v(VL16)}", f"v_lshlrev_b32 {v(VT2)}, 2, {v(LANE)}", f"v_add_u32 {v(VT2)}, s{T1}, {v(VT2)}",
      "s_nop 7")
    for qi in range(4):
        A(f"ds_write_b128 {v(VT1)}, {v(O+16*qi,4)} offset:{qi*2304}",
          f"ds_write_b128 {v(VT1)}, {v(O+16*qi+4,4)} offset:{qi*2304+1024}",
          f"ds_write_b32 {v(VT2)}, {v(O+16*qi+8)} offset:{qi*2304+2048}")
    A(f"s_lshl_b32 s{T3}, s{PASS}, 2")
    lds_signal(A, F_A0, VT0, VT1, T3)
    lds_wait(A, F_A0, 4, VT0, VT1, FAIL, T3)
    A(f"s_mul_i32 s{T1}, s{WR}, 2304", f"s_add_u32 s{T1}, s{T1}, s{SPART}",
      f"v_add_u32 {v(VT1)}, s{T1}, {v(VL16)}", f"v_lshlrev_b32 {v(VT2)}, 2, {v(LANE)}", f"v_add_u32 {v(VT2)}, s{T1}, {v(VT2)}")
    for x in range(4):
        A(f"ds_read_b128 {v(O+16*x,4)}, {v(VT1)} offset:{x*PART_W}",
          f"ds_read_b128 {v(O+16*x+4,4)}, {v(VT1)} offset:{x*PART_W+1024}",
          f"ds_read_b32 {v(O+16*x+8)}, {v(VT2)} offset:{x*PART_W+2048}")
    for x in range(1, 4):
        A(f"s_waitcnt lgkmcnt({3*(3-x)})")
        for i in range(0, 8, 2):
            A(f"v_pk_add_f32 {v(O+i,2)}, {v(O+i,2)}, {v(O+16*x+i,2)}")
        A(f"v_add_f32 {v(O+8)}, {v(O+8)}, {v(O+16*x+8)}")
    A(f"v_rcp_f32 {v(O+8)}, {v(O+8)}", "s_nop 0")
    for i in range(0, 8, 2):
        A(f"v_pk_mul_f32 {v(O+i,2)}, {v(O+i,2)}, {v(O+8,2)} op_sel_hi:[1,0]")
    store_o(O)
    ST.stamp()
    for i in range(16):
        A(f"v_mov_b32 {v(Q0+i)}, {v(Q1+i)}")
    A(f"s_add_u32 s{PASS}, s{PASS}, 1", f"s_cmp_lt_u32 s{PASS}, 2", f"s_cbranch_scc1 {L_pass}",
      f"s_branch {END}")

    A.label(L_slow)
    M, KQ = CT+8, CT+12
    A(f"s_mov_b32 s{PASS}, 0")
    Lsp = A.newlabel("spass")
    A.label(Lsp)
    part_base()
    PW = PART_W
    A("s_mov_b32 s42, 0", "s_mov_b32 s43, -1")
    for qi in range(4):
        A("s_waitcnt vmcnt(0)", f"v_mov_b32 {v(M)}, 0xff800000", f"s_mov_b32 s{KVO}, 0")
        L1 = A.newlabel("smax")
        A.label(L1)
        A(f"s_add_u32 s{T2s}, s{SKF}, s{KVO}",
          f"buffer_load_dwordx4 {v(KR,4)}, {v(VL16)}, s[{SWS}:{SWS+3}], s{T2s} offen", "s_waitcnt vmcnt(0)",
          f"v_mfma_f32_32x32x16_bf16 {v(SA,16)}, {v(KR,4)}, {v(Q0+4*qi,4)}, 0", "s_nop 15")
        for i in range(0, 16, 2):
            A(f"v_max3_f32 {v(M)}, {v(SA+i)}, {v(SA+i+1)}, {v(M)}")
        A(f"s_add_u32 s{KVO}, s{KVO}, 1024", f"s_cmp_lt_u32 s{KVO}, 0x4000", f"s_cbranch_scc1 {L1}")
        swap_reduce(A, "v_max_f32", M, VT0, 32)
        for i in range(16):
            A(f"v_mov_b32 {v(O+i)}, 0")
        A(f"s_mov_b32 s{KVO}, 0")
        L2 = A.newlabel("spv")
        A.label(L2)
        A(f"s_add_u32 s{T2s}, s{SKF}, s{KVO}", f"s_add_u32 s{T3}, s{SVF}, s{KVO}",
          f"buffer_load_dwordx4 {v(KR,4)}, {v(VL16)}, s[{SWS}:{SWS+3}], s{T2s} offen",
          f"s_mov_b64 exec, s[{EXV}:{EXV+1}]",
          f"buffer_load_dwordx4 {v(VR,4)}, {v(VVO)}, s[{SWS}:{SWS+3}], s{T3} offen",
          f"buffer_load_dwordx4 {v(VR+4,4)}, {v(VVO)}, s[{SWS}:{SWS+3}], s{T3} offen offset:512",
          "s_mov_b64 exec, -1", "s_waitcnt vmcnt(0)",
          f"v_mfma_f32_32x32x16_bf16 {v(SA,16)}, {v(KR,4)}, {v(Q0+4*qi,4)}, 0", "s_nop 15")
        for i in range(16):
            A(f"v_sub_f32 {v(SA+i)}, {v(SA+i)}, {v(M)}")
        for i in range(16):
            A(f"v_exp_f32 {v(SA+i)}, {v(SA+i)}")
        A("s_nop 1",
          f"v_smfmac_f32_32x32x32_bf16 {v(O,16)}, {v(VR,4)}, {v(SA,8)}, {v(VIDX)}",
          f"v_smfmac_f32_32x32x32_bf16 {v(O,16)}, {v(VR+4,4)}, {v(SA+8,8)}, {v(VIDX)}", "s_nop 15",
          f"s_add_u32 s{KVO}, s{KVO}, 1024", f"s_cmp_lt_u32 s{KVO}, 0x4000", f"s_cbranch_scc1 {L2}")
        A(f"s_mul_i32 s{T1}, s{WR}, {PW}", f"s_add_u32 s{T1}, s{T1}, s{SPART}",
          f"v_add_u32 {v(VT1)}, s{T1}, {v(VL16)}", f"v_lshlrev_b32 {v(VT2)}, 2, {v(LANE)}", f"v_add_u32 {v(VT2)}, s{T1}, {v(VT2)}",
          f"v_cndmask_b32 {v(O+9)}, {v(O+8)}, {v(M)}, s[42:43]",
          f"ds_write_b128 {v(VT1)}, {v(O,4)} offset:{qi*2304}",
          f"ds_write_b128 {v(VT1)}, {v(O+4,4)} offset:{qi*2304+1024}",
          f"ds_write_b32 {v(VT2)}, {v(O+9)} offset:{qi*2304+2048}")
    A(f"s_lshl_b32 s{T3}, s{PASS}, 2")
    lds_signal(A, F_A0, VT0, VT1, T3)
    lds_wait(A, F_A0, 4, VT0, VT1, FAIL, T3)
    A(f"s_mul_i32 s{T1}, s{WR}, 2304", f"s_add_u32 s{T1}, s{T1}, s{SPART}",
      f"v_add_u32 {v(VT1)}, s{T1}, {v(VL16)}", f"v_and_b32 {v(VT2)}, 31, {v(LANE)}", f"v_lshlrev_b32 {v(VT2)}, 2, {v(VT2)}",
      f"v_add_u32 {v(VT2)}, s{T1}, {v(VT2)}")
    for x in range(4):
        A(f"ds_read_b128 {v(O+16*x,4)}, {v(VT1)} offset:{x*PW}",
          f"ds_read_b128 {v(O+16*x+4,4)}, {v(VT1)} offset:{x*PW+1024}",
          f"ds_read_b32 {v(O+16*x+8)}, {v(VT2)} offset:{x*PW+2048}",
          f"ds_read_b32 {v(O+16*x+9)}, {v(VT2)} offset:{x*PW+2048+128}")
    A("s_waitcnt lgkmcnt(0)",
      f"v_max3_f32 {v(M)}, {v(O+9)}, {v(O+16+9)}, {v(O+32+9)}", f"v_max_f32 {v(M)}, {v(M)}, {v(O+48+9)}")
    for x in range(4):
        A(f"v_sub_f32 {v(O+16*x+9)}, {v(O+16*x+9)}, {v(M)}", f"v_exp_f32 {v(O+16*x+9)}, {v(O+16*x+9)}", "s_nop 0")
        for i in range(9):
            A(f"v_mul_f32 {v(O+16*x+i)}, {v(O+16*x+i)}, {v(O+16*x+9)}")
    for x in range(1, 4):
        for i in range(9):
            A(f"v_add_f32 {v(O+i)}, {v(O+i)}, {v(O+16*x+i)}")
    A(f"v_rcp_f32 {v(O+8)}, {v(O+8)}", "s_nop 0")
    for i in range(8):
        A(f"v_mul_f32 {v(O+i)}, {v(O+i)}, {v(O+8)}")
    store_o(O)
    for i in range(16):
        A(f"v_mov_b32 {v(Q0+i)}, {v(Q1+i)}")
    A(f"s_add_u32 s{PASS}, s{PASS}, 1", f"s_cmp_lt_u32 s{PASS}, 2", f"s_cbranch_scc1 {Lsp}", f"s_branch {END}")


def gen_k2(A, name="k2_kernel"):
    A.raw(f".globl {name}\n.p2align 8\n.type {name},@function\n{name}:")
    END = f"{name}_end"
    A("s_cmp_ge_u32 s2, 256", f"s_cbranch_scc1 {END}_x")
    ST = Stamps(A, 64, 1)
    ST.stamp(True); ST.stamp()
    A("s_load_dwordx4 s[44:47], s[0:1], 48",
      "s_load_dwordx2 s[48:49], s[0:1], 64",
      "s_load_dwordx2 s[50:51], s[0:1], 88")
    decode_gj(A, 2, G, J, T0)
    A("v_lshrrev_b32 v2, 6, v0", f"v_and_b32 {v(LANE)}, 63, v0", "s_nop 0", f"v_readfirstlane_b32 s{W}, v2")
    A(f"v_lshlrev_b32 v2, 2, {v(LANE)}", f"v_add_u32 v2, {L_FLAG}, v2", "v_mov_b32 v3, 0",
      "s_mov_b64 exec, 0xffff", "ds_write_b32 v2, v3", "s_mov_b64 exec, -1")
    A("s_waitcnt lgkmcnt(0)")
    srd(A, SWS, 50, WS_SIZE)
    srd(A, SWG, 44, D*F*2)
    srd(A, SWU, 46, D*F*2)
    srd(A, SWD, 48, D*F*2)
    A("s_barrier")
    L_g = A.newlabel("roleg")
    A(f"s_cmp_ge_u32 s{W}, 4", f"s_cbranch_scc1 {L_g}")
    n0 = ST.n
    gen_role_a(A, END, ST)
    na = ST.n
    A.label(L_g)
    ST.n = n0
    gen_role_g(A, END, ST)
    A.label(END)
    if DIAG:
        A("s_waitcnt vmcnt(0)")
        ST.n = 10
        ST.stamp(); ST.stamp(True)
        A("s_mov_b64 exec, -1")
        ST.flush(SWS, W, 2, 3, T0, WS_DBG)
    A.label(END + "_x")
    A("s_endpgm")
    return dict(name=name, vgpr=256, sgpr=100, accum=256, lds=K2_LDS, block=512, grid=256)
```

```python
import os, struct
from asmlib import *
from layout import *

def f32bits(x):
    return struct.unpack("<I", struct.pack("<f", x))[0]
def env(name, default):
    return int(os.environ.get(name, str(default)))

XL_TT, XL_S, XL_H = 33792, 1056, 528
L_XN = 0
L_A = 2 * XL_TT
A_SIZE = 38912
L_FLAG = L_A + A_SIZE - 128
L_RING = L_A + A_SIZE
RING = 14336
LDS_TOTAL = L_RING + 4 * RING
assert LDS_TOTAL == 163840
PART_W = 4 * 2304
(F_NONCE, F_Q1, F_Q2, F_Q3, F_Q4, F_QR, F_A0, F_A0R, F_A1, F_G1, F_WO, F_RED, F_DEC, F_QN4) = [4*i for i in range(14)]
F_QN = 64

LOG2E = 1.4426950408889634
TBOUND2 = 3600.0
VMAX = float(2**40)
SPIN_MAX = 1 << 16

SX, SWS, SOUT, SW1, SW2, SW3 = 4, 8, 12, 16, 20, 24
G, J, W, WR = 28, 29, 30, 31
T0, T1, T2, T3, T4 = 32, 33, 34, 35, 36
SPIN, NONCE = 37, 38
P_X, P_WQ, P_WK, P_WV, P_WO, P_WG, P_WU, P_WD, P_OUT, P_DBG, P_WS = 48, 50, 52, 54, 56, 60, 62, 64, 66, 68, 70
LANE = 1
SO, M0B = 72, 80
APRIO, GPRIO_LOOP, GPRIO_HI = env("APRIO", 1), env("GPRIO_LOOP", 0), env("GPRIO_HI", 2)


class VmQ:
    def __init__(self, A):
        self.A, self.ops = A, []
    def issue(self, tag):
        self.ops.append(tag)
    def count(self, tag):
        idx = max(i for i, t in enumerate(self.ops) if t == tag)
        return len(self.ops) - 1 - idx
    def wait(self, tag, extra=""):
        n = self.count(tag)
        assert n <= 63
        self.A(f"s_waitcnt vmcnt({n}){extra}")


def decode_gj(A):
    A(f"s_and_b32 s{G}, s2, 7", f"s_lshr_b32 s{T0}, s2, 6", f"s_lshl_b32 s{T0}, s{T0}, 3",
      f"s_or_b32 s{G}, s{G}, s{T0}", f"s_lshr_b32 s{J}, s2, 3", f"s_and_b32 s{J}, s{J}, 7")

def panel_voff(A, d, t0, t1, pitch):
    A(f"v_lshrrev_b32 {v(t0)}, 3, {v(LANE)}",
      f"v_bfe_u32 {v(t1)}, {v(LANE)}, 4, 1", f"v_lshlrev_b32 {v(t1)}, 2, {v(t1)}",
      f"v_and_b32 {v(d)}, 7, {v(LANE)}", f"v_xor_b32 {v(d)}, {v(d)}, {v(t1)}", f"v_lshlrev_b32 {v(d)}, 4, {v(d)}",
      f"v_mul_u32_u24 {v(t0)}, {pitch}, {v(t0)}", f"v_add_u32 {v(d)}, {v(d)}, {v(t0)}")

def tr_base(A, d, fh, hrows, t0, t1):
    A(f"v_bfe_u32 {v(t0)}, {v(LANE)}, 2, 2", f"v_lshrrev_b32 {v(t1)}, 5, {v(LANE)}",
      f"v_mul_u32_u24 {v(t1)}, {hrows}, {v(t1)}", f"v_add_u32 {v(t1)}, {v(t1)}, {v(t0)}",
      f"v_lshlrev_b32 {v(d)}, 7, {v(t1)}", f"v_lshrrev_b32 {v(t0)}, 1, {v(t0)}",
      f"v_xor_b32 {v(t0)}, {fh}, {v(t0)}", f"v_lshlrev_b32 {v(t0)}, 6, {v(t0)}", f"v_add_u32 {v(d)}, {v(d)}, {v(t0)}",
      f"v_bfe_u32 {v(t0)}, {v(LANE)}, 4, 1", f"v_lshlrev_b32 {v(t0)}, 5, {v(t0)}", f"v_add_u32 {v(d)}, {v(d)}, {v(t0)}",
      f"v_and_b32 {v(t0)}, 3, {v(LANE)}", f"v_lshlrev_b32 {v(t0)}, 3, {v(t0)}", f"v_add_u32 {v(d)}, {v(d)}, {v(t0)}")

def lds_signal(A, off, va, vb):
    A(f"v_mov_b32 {v(va)}, {L_FLAG + off}", f"v_mov_b32 {v(vb)}, 1", "s_mov_b64 exec, 1",
      f"ds_add_u32 {v(va)}, {v(vb)}", "s_mov_b64 exec, -1")

def lds_wait(A, off, count, va, vb, fail, dst=None, sleep=0):
    L, Ld = A.newlabel("ldsw"), A.newlabel("ldsd")
    r = T0 if dst is None else dst
    A(f"v_mov_b32 {v(va)}, {L_FLAG + off}", f"s_mov_b32 s{SPIN}, {SPIN_MAX}")
    A.label(L)
    A(f"ds_read_b32 {v(vb)}, {v(va)}", "s_waitcnt lgkmcnt(0)", f"v_readfirstlane_b32 s{r}, {v(vb)}", "s_nop 3",
      f"s_cmp_ge_u32 s{r}, {count}", f"s_cbranch_scc1 {Ld}",
      f"s_sub_u32 s{SPIN}, s{SPIN}, 1", f"s_cmp_eq_u32 s{SPIN}, 0", f"s_cbranch_scc1 {fail}",
      *([f"s_sleep {sleep}"] if sleep else []), f"s_branch {L}")
    A.label(Ld)

def flag_store(A, soff, va, vb):
    A(f"v_mov_b32 {v(va)}, 0", f"v_mov_b32 {v(vb)}, s{NONCE}", "s_mov_b64 exec, 1",
      f"buffer_store_dword {v(vb)}, {v(va)}, s[{SWS}:{SWS+3}], s{soff} offen sc1", "s_mov_b64 exec, -1")

def flag_poll(A, soff, vaddr, vt, fail, sleep=2):
    L, Ld = A.newlabel("poll"), A.newlabel("polld")
    A(f"s_mov_b32 s{SPIN}, {SPIN_MAX}")
    A.label(L)
    A(f"buffer_load_dword {v(vt)}, {v(vaddr)}, s[{SWS}:{SWS+3}], s{soff} offen sc1", "s_waitcnt vmcnt(0)",
      f"v_cmp_eq_u32 vcc, s{NONCE}, {v(vt)}", "s_nop 4", "s_cmp_eq_u64 vcc, exec", f"s_cbranch_scc1 {Ld}",
      f"s_sub_u32 s{SPIN}, s{SPIN}, 1", f"s_cmp_eq_u32 s{SPIN}, 0", f"s_cbranch_scc1 {fail}",
      *([f"s_sleep {sleep}"] if sleep else []), f"s_branch {L}")
    A.label(Ld)

def nonce_fetch(A, va, vb, fail):
    L, Ld = A.newlabel("nf"), A.newlabel("nfd")
    A(f"s_mov_b32 s{SPIN}, {SPIN_MAX}")
    A.label(L)
    A(f"v_mov_b32 {v(va)}, 0", f"buffer_load_dword {v(vb)}, {v(va)}, s[{SDBG}:{SDBG+3}], 0 offen sc1", "s_waitcnt vmcnt(0)",
      f"v_readfirstlane_b32 s{NONCE}, {v(vb)}", "s_nop 3", f"s_cmp_lg_u32 s{NONCE}, 0", f"s_cbranch_scc1 {Ld}",
      f"s_sub_u32 s{SPIN}, s{SPIN}, 1", f"s_cmp_eq_u32 s{SPIN}, 0", f"s_cbranch_scc1 {fail}",
      "s_sleep 2", f"s_branch {L}")
    A.label(Ld)
SDBG = 40

TRACE = env("TRACE", 0)
def trace_init(A):
    if not TRACE: return
    A(f"s_lshl_b32 s100, s2, 3", f"s_add_u32 s100, s100, s{W}", "s_lshl_b32 s100, s100, 8", f"s_add_u32 s100, s100, {WS_DBG + 0x40000}")
def trace(A, va, vb):
    if not TRACE: return
    if TRACE == 2:
        A("s_memrealtime s[94:95]", "s_waitcnt lgkmcnt(0)", f"v_mov_b32 {v(va)}, 0", f"v_mov_b32 {v(vb)}, s94", "s_mov_b64 exec, 1",
          f"buffer_store_dword {v(vb)}, {v(va)}, s[{SWS}:{SWS+3}], s100 offen offset:128", "s_mov_b64 exec, -1")
        A("s_nop 1")
    A("s_memtime s[92:93]", "s_waitcnt lgkmcnt(0)", f"v_mov_b32 {v(va)}, 0", f"v_mov_b32 {v(vb)}, s92", "s_mov_b64 exec, 1",
      f"buffer_store_dword {v(vb)}, {v(va)}, s[{SWS}:{SWS+3}], s100 offen", "s_mov_b64 exec, -1", "s_add_u32 s100, s100, 4")

ROW16 = ["row_ror:8", "row_ror:4", "row_ror:2", "row_ror:1"]

def silu_gate(A, val, n, tmp, slog):
    for i in range(0, n, 2):
        A(f"v_pk_mul_f32 {v(tmp+i,2)}, {v(val+i,2)}, s[{slog}:{slog+1}] op_sel_hi:[1,0]")
    for i in range(n):
        A(f"v_exp_f32 {v(tmp+i)}, {v(tmp+i)}")
    A("s_nop 0")
    for i in range(0, n, 2):
        A(f"v_pk_add_f32 {v(tmp+i,2)}, {v(tmp+i,2)}, 1.0 op_sel_hi:[1,0]")
    for i in range(n):
        A(f"v_rcp_f32 {v(tmp+i)}, {v(tmp+i)}")
    A("s_nop 0")


VP = 4
VLNW = 2
A_AB, A_BB = 122, 123
G_AB0, G_AB1, G_B0, G_B1 = 5, 6, 7, 122
K_XB, K_WB, K_KS, K_VS = 5, 6, 7, 122
RB = 39
S_KST, S_VST = 81, 82

def xn_read_base(A, d, t0):
    A(f"v_lshrrev_b32 {v(t0)}, 5, {v(LANE)}", f"v_mul_u32_u24 {v(d)}, {XL_H}, {v(t0)}",
      f"v_and_b32 {v(t0)}, 31, {v(LANE)}", f"v_lshlrev_b32 {v(t0)}, 4, {v(t0)}", f"v_add_u32 {v(d)}, {v(d)}, {v(t0)}")

def gen_phase0(A, END):
    XR, FR = 8, 40
    A("s_load_dwordx16 s[48:63], s[0:1], 0", "s_load_dwordx8 s[64:71], s[0:1], 64")
    decode_gj(A)
    A("v_lshrrev_b32 v2, 6, v0", f"v_and_b32 {v(LANE)}, 63, v0", "s_nop 0", f"v_readfirstlane_b32 s{W}, v2")
    A(f"v_lshrrev_b32 v2, 3, {v(LANE)}", f"v_and_b32 v3, 7, {v(LANE)}", "v_lshlrev_b32 v3, 4, v3",
      f"s_lshl_b32 s{T0}, s{G}, 6", f"s_lshl_b32 s{T1}, s{W}, 3", f"s_add_u32 s{T0}, s{T0}, s{T1}",
      f"v_add_u32 v2, s{T0}, v2", "v_lshlrev_b32 v2, 10, v2", "v_add_u32 v2, v2, v3",
      f"s_and_b32 s{WR}, s{W}, 3")
    A("s_waitcnt lgkmcnt(0)")
    srd(A, SX, P_X, S*D*2)
    L_x, L_g = A.newlabel("x"), A.newlabel("p0g")
    A(f"s_cmp_lt_u32 s{W}, 4", f"s_cbranch_scc1 {L_x}")
    PFD, SPF = 120, 44
    for wv, ptr, nbytes, per in ((0, P_WO, D*D*2, 16), (1, P_WG, D*F*2, 56), (2, P_WU, D*F*2, 56), (3, P_WD, D*F*2, 56)):
        Ln = A.newlabel("pfw")
        A(f"s_cmp_eq_u32 s{WR}, {wv}", f"s_cbranch_scc0 {Ln}")
        srd(A, SPF, ptr, nbytes)
        A(f"s_mul_i32 s{T0}, s2, {per}", f"v_min_u32 v5, {per-1}, {v(LANE)}", f"v_add_u32 v5, s{T0}, v5", "v_lshlrev_b32 v5, 7, v5",
          f"buffer_load_dword {v(PFD)}, v5, s[{SPF}:{SPF+3}], 0 offen",
          f"buffer_load_dword {v(PFD+1)}, v5, s[{SPF}:{SPF+3}], 0 offen offset:64")
        A.label(Ln)
    A.label(L_x)
    for c in range(8):
        A(f"buffer_load_dwordx4 {v(XR+4*c,4)}, v2, s[{SX}:{SX+3}], 0 offen offset:{128*c}")
    srd(A, SWS, P_WS, WS_SIZE)
    srd(A, SDBG, P_DBG, 256)
    trace_init(A)
    trace(A, 5, 6)
    L_nc = A.newlabel("nocas")
    A("s_cmp_lt_u32 s2, 8", f"s_cbranch_scc0 {L_nc}", f"s_cmp_eq_u32 s{W}, 7", f"s_cbranch_scc0 {L_nc}",
      f"s_memrealtime s[{T2}:{T2+1}]", "s_waitcnt lgkmcnt(0)", f"s_or_b32 s{T2}, s{T2}, 1",
      f"v_mov_b32 v122, s{T2}", "v_mov_b32 v123, 0", "v_mov_b32 v124, 0", "s_mov_b64 exec, 1",
      f"buffer_atomic_cmpswap v[122:123], v124, s[{SDBG}:{SDBG+3}], 0 offen sc1", "s_mov_b64 exec, -1", "s_nop 1")
    A.label(L_nc)
    A(f"v_and_b32 v2, 31, {v(LANE)}", "v_lshlrev_b32 v2, 2, v2", f"v_add_u32 v2, {L_FLAG}, v2", "v_mov_b32 v3, 0",
      "ds_write_b32 v2, v3")
    A(f"s_lshr_b32 s{T0}, s{W}, 2", f"s_mul_i32 s{T0}, s{T0}, {XL_TT}",
      f"s_lshl_b32 s{T1}, s{WR}, 7", f"s_add_u32 s{T0}, s{T0}, s{T1}",
      f"v_lshrrev_b32 {v(VLNW)}, 3, {v(LANE)}", f"v_lshlrev_b32 {v(VLNW)}, 4, {v(VLNW)}", f"v_add_u32 {v(VLNW)}, s{T0}, {v(VLNW)}",
      f"v_bfe_u32 v3, {v(LANE)}, 1, 2", f"v_mul_u32_u24 v3, {XL_S}, v3", f"v_add_u32 {v(VLNW)}, {v(VLNW)}, v3",
      f"v_and_b32 v3, 1, {v(LANE)}", f"v_mul_u32_u24 v3, {XL_H}, v3", f"v_add_u32 {v(VLNW)}, {v(VLNW)}, v3")
    L_g7, L_xw = A.newlabel("p0g7"), A.newlabel("xw")
    A(f"s_cmp_ge_u32 s{W}, 4", f"s_cbranch_scc1 {L_g}")
    srd(A, SW1, P_WQ, D*D*2)
    srd(A, SW2, P_WQ, D*D*2)
    panel_voff(A, VP, 5, 6, 2*D)
    A(f"s_lshl_b32 s{T0}, s{J}, 7", f"v_add_u32 {v(VP)}, s{T0}, {v(VP)}",
      f"s_lshl_b32 s{T0}, s{WR}, 16", f"s_lshl_b32 s{M0B}, s{WR}, 13", f"s_add_u32 s{M0B}, s{M0B}, {L_A}")
    for i in range(8):
        A(f"s_add_u32 s{SO+i}, s{T0}, {i*8192}")
    A(f"s_lshr_b32 s{T2}, s{WR}, 1")
    tr_base(A, A_AB, f"s{T2}", 8, 5, 6)
    A(f"v_add_u32 {v(A_AB)}, {L_A}, {v(A_AB)}")
    xn_read_base(A, A_BB, 5)
    A(f"s_and_b32 s{T0}, s{WR}, 1", f"s_mul_i32 s{T0}, s{T0}, {XL_TT}", f"v_add_u32 {v(A_BB)}, s{T0}, {v(A_BB)}",
      f"s_branch {L_xw}")
    A.label(L_g)
    A(f"s_mul_i32 s{RB}, s{WR}, {RING}", f"s_add_u32 s{RB}, s{RB}, {L_RING}")
    A(f"s_cmp_eq_u32 s{J}, 7", f"s_cbranch_scc1 {L_g7}")
    srd(A, SW1, P_WG, D*F*2)
    srd(A, SW2, P_WU, D*F*2)
    panel_voff(A, VP, 5, 6, 2*F)
    A(f"s_lshl_b32 s{T0}, s{J}, 9", f"s_lshl_b32 s{T1}, s{WR}, 7", f"s_add_u32 s{T0}, s{T0}, s{T1}",
      f"v_add_u32 {v(VP)}, s{T0}, {v(VP)}", f"s_mov_b32 s{M0B}, s{RB}")
    for i in range(8):
        A(f"s_mov_b32 s{SO+i}, {(16*(i//4) + 8*(i%2))*2*F}")
    tr_base(A, G_AB0, 0, 8, 3, 123)
    tr_base(A, G_AB1, 1, 8, 3, 123)
    A(f"v_add_u32 {v(G_AB0)}, s{RB}, {v(G_AB0)}", f"v_add_u32 {v(G_AB1)}, s{RB}, {v(G_AB1)}")
    xn_read_base(A, G_B0, 3)
    A(f"v_add_u32 {v(G_B1)}, {XL_TT}, {v(G_B0)}", f"s_branch {L_xw}")
    A.label(L_g7)
    srd(A, SW1, P_WK, D*DH*2)
    srd(A, SW2, P_WV, D*DH*2)
    A(f"v_lshrrev_b32 v3, 1, {v(LANE)}", "v_and_b32 v5, 0x13, v3",
      "v_and_b32 v6, 4, v3", "v_lshlrev_b32 v6, 1, v6", "v_or_b32 v5, v5, v6",
      "v_and_b32 v6, 8, v3", "v_lshrrev_b32 v6, 1, v6", "v_or_b32 v5, v5, v6",
      f"v_lshlrev_b32 {v(VP)}, 5, v5", f"v_and_b32 v3, 1, {v(LANE)}", "v_lshlrev_b32 v3, 4, v3", f"v_add_u32 {v(VP)}, {v(VP)}, v3",
      f"s_lshl_b32 s{M0B}, s{WR}, 13", f"s_add_u32 s{M0B}, s{M0B}, {L_RING}", f"s_lshl_b32 s{T0}, s{WR}, 12")
    for i in range(8):
        A(f"s_add_u32 s{SO+i}, s{T0}, {((i%2) + 2*(i//4))*1024}")
    A(f"s_lshr_b32 s{T2}, s{WR}, 1", f"s_and_b32 s{T3}, s{WR}, 1",
      f"s_mul_i32 s{T0}, s{T2}, {XL_TT}", f"s_lshl_b32 s{T1}, s{T3}, 8", f"s_add_u32 s{T0}, s{T0}, s{T1}",
      f"v_lshrrev_b32 v3, 5, {v(LANE)}", f"v_mul_u32_u24 {v(K_XB)}, {XL_S}, v3",
      f"v_bfe_u32 v123, {v(LANE)}, 4, 1", f"v_mul_u32_u24 v124, {XL_H}, v123", f"v_add_u32 {v(K_XB)}, {v(K_XB)}, v124",
      f"v_and_b32 v125, 15, {v(LANE)}", "v_lshlrev_b32 v125, 4, v125", f"v_add_u32 {v(K_XB)}, {v(K_XB)}, v125",
      f"v_add_u32 {v(K_XB)}, s{T0}, {v(K_XB)}")
    A(f"v_lshlrev_b32 {v(K_WB)}, 9, v3", "v_lshlrev_b32 v124, 7, v123", f"v_add_u32 {v(K_WB)}, {v(K_WB)}, v124",
      f"v_bfe_u32 v124, {v(LANE)}, 2, 2", "v_lshlrev_b32 v124, 5, v124", f"v_add_u32 {v(K_WB)}, {v(K_WB)}, v124",
      f"v_and_b32 v124, 3, {v(LANE)}", "v_lshlrev_b32 v124, 3, v124", f"v_add_u32 {v(K_WB)}, {v(K_WB)}, v124",
      f"v_add_u32 {v(K_WB)}, {L_RING}, {v(K_WB)}")
    A(f"v_lshlrev_b32 {v(K_KS)}, 9, v123", f"v_add_u32 {v(K_KS)}, {v(K_KS)}, v125", "v_lshlrev_b32 v124, 3, v3", f"v_add_u32 {v(K_KS)}, {v(K_KS)}, v124",
      f"v_lshlrev_b32 {v(K_VS)}, 8, v3", f"v_add_u32 {v(K_VS)}, {v(K_VS)}, v125", "v_lshlrev_b32 v124, 3, v123", f"v_add_u32 {v(K_VS)}, {v(K_VS)}, v124",
      f"s_lshl_b32 s{T0}, s{G}, 1", f"s_add_u32 s{T0}, s{T0}, s{T2}", f"s_lshl_b32 s{T0}, s{T0}, 12", f"s_add_u32 s{T0}, s{T0}, {WS_KV}",
      f"s_lshl_b32 s{T1}, s{T3}, 8", f"s_add_u32 s{S_KST}, s{T1}, s{T0}",
      f"s_lshl_b32 s{T1}, s{T3}, 10", f"s_add_u32 s{S_VST}, s{T1}, s{T0}", f"s_add_u32 s{S_VST}, s{S_VST}, 1024")
    A.label(L_xw)
    A("s_mov_b32 s47, 0xffff0000", "s_waitcnt vmcnt(0)")
    trace(A, 3, 124)
    L = []
    for i in range(32):
        L += [f"v_lshlrev_b32 {v(FR+2*i)}, 16, {v(XR+i)}", f"v_and_b32 {v(FR+2*i+1)}, s47, {v(XR+i)}"]
    AC = 104
    for q in range(4):
        L.append(f"v_pk_add_f32 {v(AC+2*q,2)}, {v(FR+2*q,2)}, {v(FR+8+2*q,2)}")
    for i in range(16, 64, 2):
        q = (i // 2) % 4
        L.append(f"v_pk_add_f32 {v(AC+2*q,2)}, {v(AC+2*q,2)}, {v(FR+i,2)}")
    step = env("LN_DMA_STEP", 11)
    for i in range(8):
        sr = SW1 if (i//2) % 2 == 0 else SW2
        pos = 4 + i*step + 3*i
        L[pos:pos] = [f"s_add_u32 m0, s{M0B}, {i*1024}", "s_nop 0", f"buffer_load_dwordx4 {v(VP)}, s[{sr}:{sr+3}], s{SO+i} offen lds"]
    A(*L)
    def tree():
        A(f"v_pk_add_f32 {v(AC,2)}, {v(AC,2)}, {v(AC+2,2)}", f"v_pk_add_f32 {v(AC+4,2)}, {v(AC+4,2)}, {v(AC+6,2)}",
          f"v_pk_add_f32 {v(AC,2)}, {v(AC,2)}, {v(AC+4,2)}", f"v_add_f32 {v(AC)}, {v(AC)}, {v(AC+1)}")
        dpp_reduce(A, "v_add_f32", AC, None, ["quad_perm:[1,0,3,2]", "quad_perm:[2,3,0,1]", "row_half_mirror"])
    tree()
    MEAN, VAR, RR, CC = 112, 114, 116, 118
    A(f"v_mul_f32 {v(MEAN)}, {f32bits(1/512):#x}, {v(AC)}")
    for i in range(0, 64, 2):
        A(f"v_pk_add_f32 {v(FR+i,2)}, {v(FR+i,2)}, {v(MEAN,2)} op_sel_hi:[1,0] neg_lo:[0,1] neg_hi:[0,1]")
    for q in range(4):
        A(f"v_pk_mul_f32 {v(AC+2*q,2)}, {v(FR+2*q,2)}, {v(FR+2*q,2)}")
    for i in range(8, 64, 2):
        q = (i // 2) % 4
        A(f"v_pk_fma_f32 {v(AC+2*q,2)}, {v(FR+i,2)}, {v(FR+i,2)}, {v(AC+2*q,2)}")
    tree()
    def round_bf16(r):
        A(f"v_cvt_pk_bf16_f32 {v(r)}, {v(r)}, {v(r)}", f"v_lshlrev_b32 {v(r)}, 16, {v(r)}")
    A(f"v_mul_f32 {v(VAR)}, {f32bits(1/512):#x}, {v(AC)}")
    round_bf16(VAR)
    A(f"v_add_f32 {v(VAR)}, {f32bits(1e-5):#x}, {v(VAR)}")
    round_bf16(VAR)
    A(f"v_sqrt_f32 {v(VAR)}, {v(VAR)}", "s_nop 0")
    round_bf16(VAR)
    A(f"v_rcp_f32 {v(RR)}, {v(VAR)}", f"v_mov_b32 {v(CC)}, {v(MEAN)}")
    round_bf16(CC)
    A(f"v_sub_f32 {v(CC)}, {v(MEAN)}, {v(CC)}", f"v_mul_f32 {v(CC)}, {v(CC)}, {v(RR)}")
    for c in range(8):
        for i in range(8*c, 8*c+8, 2):
            A(f"v_pk_fma_f32 {v(FR+i,2)}, {v(FR+i,2)}, {v(RR,2)}, {v(CC,2)} op_sel_hi:[1,0,0]")
        for i in range(4*c, 4*c+4):
            A(f"v_cvt_pk_bf16_f32 {v(XR+i)}, {v(FR+2*i)}, {v(FR+2*i+1)}")
        A(f"ds_write_b128 {v(VLNW)}, {v(XR+4*c,4)} offset:{L_XN + c*4*XL_S}")
    L_w1, L_w2 = A.newlabel("w1"), A.newlabel("w2")
    A(f"s_cmp_lt_u32 s{W}, 4", f"s_cbranch_scc1 {L_w1}", f"s_cmp_eq_u32 s{J}, 7", f"s_cbranch_scc0 {L_w2}")
    A.label(L_w1)
    A("s_waitcnt vmcnt(0)")
    A.label(L_w2)
    A("s_waitcnt lgkmcnt(0)")
    trace(A, 3, 124)
    A("s_barrier")
    trace(A, 3, 124)

def gen_role_a(A, END):
    FAIL = END
    VL16, VVO, VT0, VT1, VT2, VIDX, VKO = 2, 3, 5, 6, 7, 8, 9
    VPW, VPW2, VPR, VPR2 = 10, 11, 12, 13
    O, SA, SB_, Q0, Q1, KR, VR = 16, 80, 96, 112, 128, 144, 160
    CT = 192
    KVO, PASS, CNT, TT, FH = 39, 44, 45, 46, 47
    AB, BB = A_AB, A_BB
    S_ = [SA, SB_]
    A(f"s_setprio {APRIO}", f"s_and_b32 s{TT}, s{WR}, 1", f"s_lshr_b32 s{FH}, s{WR}, 1")
    L_n0 = A.newlabel("n0")
    A(f"s_cmp_eq_u32 s{WR}, 0", f"s_cbranch_scc0 {L_n0}", f"v_mov_b32 {v(VT0)}, 0",
      f"buffer_load_dword {v(CT)}, {v(VT0)}, s[{SDBG}:{SDBG+3}], 0 offen sc1")
    A.label(L_n0)
    ACC, AS, BS, NS = 40, 56, 72, 4
    def qround(s0):
        def rd(st):
            k = st % NS
            A(f"ds_read_b64_tr_b16 {v(AS+4*k,2)}, {v(AB)} offset:{(st-s0)*2048}",
              f"ds_read_b64_tr_b16 {v(AS+4*k+2,2)}, {v(AB)} offset:{(st-s0)*2048+512}",
              f"ds_read_b128 {v(BS+4*k,4)}, {v(BB)} offset:{L_XN + st*XL_S}")
        for st in range(s0, s0+NS-1):
            rd(st)
        for st in range(s0, s0+16):
            if st + NS - 1 < s0 + 16:
                rd(st + NS - 1)
            left = min(NS - 1, s0 + 15 - st)
            k = st % NS
            A(f"s_waitcnt lgkmcnt({3*left})",
              f"v_mfma_f32_32x32x16_bf16 {v(ACC,16)}, {v(AS+4*k,4)}, {v(BS+4*k,4)}, {'0' if st==0 else v(ACC,16)}")
    qround(0)
    trace(A, VT0, VT1)
    lds_signal(A, F_Q1, VT0, VT1)
    A(f"s_lshl_b32 s{T3}, s{WR}, 16", f"s_add_u32 s{T3}, s{T3}, {256*1024}")
    lds_wait(A, F_Q1, 4, VT0, VT1, FAIL)
    for i in range(8):
        A(f"s_add_u32 m0, s{M0B}, {i*1024}", f"s_add_u32 s{T1}, s{T3}, {(i*8192)}",
          f"buffer_load_dwordx4 {v(VP)}, s[{SW1}:{SW1+3}], s{T1} offen lds")
    A(f"v_lshlrev_b32 {v(VL16)}, 4, {v(LANE)}", f"v_mov_b32 {v(VIDX)}, 0xdddddddd",
      f"s_lshl_b32 s{T0}, s{WR}, 16", f"s_add_u32 s{T0}, s{T0}, {WS_KV}", f"v_add_u32 {v(VKO)}, s{T0}, {v(VL16)}",
      f"v_lshrrev_b32 {v(VT0)}, 5, {v(LANE)}", f"v_lshlrev_b32 {v(VVO)}, 8, {v(VT0)}",
      f"v_and_b32 {v(VT0)}, 15, {v(LANE)}", f"v_lshlrev_b32 {v(VT1)}, 4, {v(VT0)}", f"v_add_u32 {v(VVO)}, {v(VVO)}, {v(VT1)}",
      f"v_and_b32 {v(VT0)}, 11, {v(VT0)}", f"v_cmp_eq_u32 vcc, 0, {v(VT0)}", f"v_mov_b32 {v(VT1)}, 528", f"v_mov_b32 {v(VT2)}, 512",
      f"v_cndmask_b32 {v(VT1)}, {v(VT1)}, {v(VT2)}, vcc",
      f"v_bfe_u32 {v(VT0)}, {v(LANE)}, 4, 1", f"v_cmp_eq_u32 vcc, 1, {v(VT0)}", "s_nop 1",
      f"v_cndmask_b32 {v(VVO)}, {v(VVO)}, {v(VT1)}, vcc", f"v_add_u32 {v(VVO)}, s{T0}, {v(VVO)}",
      f"s_mul_i32 s{T1}, s{WR}, {PART_W}", f"s_add_u32 s{T1}, s{T1}, {L_A}",
      f"v_add_u32 {v(VPW)}, s{T1}, {v(VL16)}", f"v_lshlrev_b32 {v(VT2)}, 2, {v(LANE)}", f"v_add_u32 {v(VPW2)}, s{T1}, {v(VT2)}",
      f"s_mul_i32 s{T1}, s{WR}, 2304", f"s_add_u32 s{T1}, s{T1}, {L_A}",
      f"v_add_u32 {v(VPR)}, s{T1}, {v(VL16)}", f"v_add_u32 {v(VPR2)}, s{T1}, {v(VT2)}")
    A("s_waitcnt vmcnt(0)")
    L_n1, L_n2 = A.newlabel("n1"), A.newlabel("n2")
    A(f"s_cmp_eq_u32 s{WR}, 0", f"s_cbranch_scc0 {L_n1}",
      f"v_readfirstlane_b32 s{NONCE}, {v(CT)}", "s_nop 3", f"s_cmp_lg_u32 s{NONCE}, 0", f"s_cbranch_scc1 {L_n2}")
    nonce_fetch(A, VT0, VT1, FAIL)
    A.label(L_n2)
    A(f"v_mov_b32 {v(VT0)}, {L_FLAG + F_NONCE}", f"v_mov_b32 {v(VT1)}, s{NONCE}", f"ds_write_b32 {v(VT0)}, {v(VT1)}")
    A.label(L_n1)
    lds_signal(A, F_Q2, VT0, VT1)
    lds_wait(A, F_Q2, 4, VT0, VT1, FAIL)
    trace(A, VT0, VT1)
    qround(16)
    lds_signal(A, F_Q3, VT0, VT1)
    trace(A, VT0, VT1)
    A(f"s_mov_b32 s{T2}, {f32bits(QSCALE):#x}",
      f"s_lshl_b32 s{T0}, s{TT}, 2", f"s_lshl_b32 s{T1}, s{FH}, 1", f"s_add_u32 s{T0}, s{T0}, s{T1}",
      f"s_lshl_b32 s{T0}, s{T0}, 10", f"s_add_u32 s{T4}, s{T0}, {L_A}", "s_nop 3")
    for i in range(0, 16, 2):
        A(f"v_pk_mul_f32 {v(ACC+i,2)}, {v(ACC+i,2)}, s[{T2}:{T2+1}] op_sel_hi:[1,0]")
    N0, N1, PK = 88, 89, 92
    for i in range(8):
        A(f"v_cvt_pk_bf16_f32 {v(PK+i)}, {v(ACC+2*i)}, {v(ACC+2*i+1)}")
    A(f"v_add_u32 {v(VT2)}, s{T4}, {v(VL16)}")
    lds_wait(A, F_Q3, 4, VT0, VT1, FAIL)
    A(f"ds_write_b128 {v(VT2)}, {v(PK,4)}", f"ds_write_b128 {v(VT2)}, {v(PK+4,4)} offset:1024")
    lds_signal(A, F_Q4, VT0, VT1)
    A(f"v_mul_f32 {v(N0)}, {v(ACC)}, {v(ACC)}", f"v_mul_f32 {v(N1)}, {v(ACC+8)}, {v(ACC+8)}")
    for i in range(1, 8):
        A(f"v_fma_f32 {v(N0)}, {v(ACC+i)}, {v(ACC+i)}, {v(N0)}", f"v_fma_f32 {v(N1)}, {v(ACC+8+i)}, {v(ACC+8+i)}, {v(N1)}")
    swap_reduce(A, "v_add_f32", N0, VT0, 32)
    swap_reduce(A, "v_add_f32", N1, VT0, 32)
    A(f"v_max_f32 {v(N0)}, {v(N0)}, {v(N1)}")
    dpp_reduce(A, "v_max_f32", N0, None, ROW16)
    swap_reduce(A, "v_max_f32", N0, VT0, 16)
    A(f"s_lshl_b32 s{T0}, s{WR}, 2", f"s_add_u32 s{T0}, s{T0}, {L_FLAG + F_QN}", f"v_mov_b32 {v(VT2)}, s{T0}",
      f"ds_write_b32 {v(VT2)}, {v(N0)}")
    lds_signal(A, F_QN4, VT0, VT1)
    lds_wait(A, F_Q4, 4, VT0, VT1, FAIL)
    A(f"v_add_u32 {v(VT2)}, {L_A}, {v(VL16)}")
    for p, q in ((0, Q0), (1, Q1)):
        for hh in range(4):
            A(f"ds_read_b128 {v(q+4*hh,4)}, {v(VT2)} offset:{(p*4+hh)*1024}")
    A("s_waitcnt lgkmcnt(0)")
    lds_signal(A, F_QR, VT0, VT1)
    trace(A, VT0, VT1)
    L_wdec, L_dec = A.newlabel("wdec"), A.newlabel("dec")
    A(f"s_cmp_eq_u32 s{WR}, 0", f"s_cbranch_scc0 {L_wdec}")
    GA, GB = CT+4, CT+8
    Lp, Lpd = A.newlabel("kvp"), A.newlabel("kvpd")
    A(f"v_lshrrev_b32 {v(VT0)}, 2, {v(LANE)}", f"v_lshlrev_b32 {v(VT0)}, 9, {v(VT0)}",
      f"v_and_b32 {v(VT1)}, 3, {v(LANE)}", f"v_lshlrev_b32 {v(VT1)}, 4, {v(VT1)}", f"v_add_u32 {v(VT2)}, {v(VT0)}, {v(VT1)}",
      f"s_mov_b32 s{T1}, {WS_FLAG}", f"s_mov_b32 s{T2}, {WS_FLAG + 16*512}", f"s_mov_b32 s{SPIN}, {SPIN_MAX}")
    A.label(Lp)
    A(f"buffer_load_dwordx4 {v(GA,4)}, {v(VT2)}, s[{SWS}:{SWS+3}], s{T1} offen sc1",
      f"buffer_load_dwordx4 {v(GB,4)}, {v(VT2)}, s[{SWS}:{SWS+3}], s{T2} offen sc1", "s_waitcnt vmcnt(0)",
      f"v_cmp_eq_u32 vcc, s{NONCE}, {v(GA)}", f"v_cmp_eq_u32 s[96:97], s{NONCE}, {v(GB)}", "s_nop 4",
      "s_and_b64 vcc, vcc, s[96:97]", "s_cmp_eq_u64 vcc, exec", f"s_cbranch_scc1 {Lpd}",
      f"s_sub_u32 s{SPIN}, s{SPIN}, 1", f"s_cmp_eq_u32 s{SPIN}, 0", f"s_cbranch_scc1 {FAIL}",
      f"s_branch {Lp}")
    A.label(Lpd)
    KN, VN, QN = GA+1, GA+2, CT+1
    lds_wait(A, F_QN4, 4, VT0, VT1, FAIL)
    A(f"v_and_b32 {v(VT0)}, 3, {v(LANE)}", f"v_lshlrev_b32 {v(VT0)}, 2, {v(VT0)}", f"v_add_u32 {v(VT0)}, {L_FLAG + F_QN}, {v(VT0)}",
      f"ds_read_b32 {v(QN)}, {v(VT0)}",
      f"v_max_f32 {v(KN)}, {v(KN)}, {v(GB+1)}", f"v_max_f32 {v(VN)}, {v(VN)}, {v(GB+2)}")
    for r in (KN, VN):
        dpp_reduce(A, "v_max_f32", r, None, ROW16)
        swap_reduce(A, "v_max_f32", r, VT0, 16)
        swap_reduce(A, "v_max_f32", r, VT0, 32)
    A("s_waitcnt lgkmcnt(0)")
    dpp_reduce(A, "v_max_f32", QN, None, ROW16[2:])
    A(f"v_mul_f32 {v(KN)}, {v(KN)}, {v(QN)}",
      f"v_mov_b32 {v(VT0)}, {f32bits(TBOUND2):#x}", f"v_mov_b32 {v(VT1)}, {f32bits(VMAX):#x}",
      f"v_cmp_le_f32 vcc, {v(KN)}, {v(VT0)}", f"v_cmp_le_f32 s[96:97], {v(VN)}, {v(VT1)}", "s_nop 4",
      "s_and_b64 vcc, vcc, s[96:97]", "s_cmp_eq_u64 vcc, exec", f"s_cselect_b32 s{T4}, 1, 2",
      f"v_mov_b32 {v(VT0)}, {L_FLAG + F_DEC}", f"v_mov_b32 {v(VT1)}, s{T4}", f"ds_write_b32 {v(VT0)}, {v(VT1)}",
      f"s_branch {L_dec}")
    A.label(L_wdec)
    lds_wait(A, F_DEC, 1, VT0, VT1, FAIL, dst=T4)
    lds_wait(A, F_NONCE, 1, VT0, VT1, FAIL, dst=NONCE)
    A.label(L_dec)
    L_slow = A.newlabel("slow")
    trace(A, VT0, VT1)
    A(f"s_cmp_eq_u32 s{T4}, 1", f"s_cbranch_scc0 {L_slow}")

    KVB = 98
    def kvload_list(set_):
        return [f"global_load_dwordx4 {v(KR+4*set_,4)}, {v(VKO)}, s[{KVB}:{KVB+1}] sc1",
                f"global_load_dwordx4 {v(VR+8*set_,4)}, {v(VVO)}, s[{KVB}:{KVB+1}] offset:1024 sc1",
                f"global_load_dwordx4 {v(VR+8*set_+4,4)}, {v(VVO)}, s[{KVB}:{KVB+1}] offset:2048 sc1",
                f"s_add_u32 s{KVO}, s{KVO}, 4096", f"s_and_b32 s{KVO}, s{KVO}, 0xffff",
                f"s_add_u32 s{KVB}, s{P_WS}, s{KVO}", f"s_addc_u32 s{KVB+1}, s{P_WS+1}, 0"]
    def kv_reset():
        A(f"s_mov_b32 s{KVO}, 0", f"s_mov_b32 s{KVB}, s{P_WS}", f"s_mov_b32 s{KVB+1}, s{P_WS+1}")
    S_OST, S_OFL = 81, 82
    A(f"s_lshl_b32 s{S_OST}, s{G}, 6", f"s_lshl_b32 s{T1}, s{J}, 2", f"s_add_u32 s{S_OST}, s{S_OST}, s{T1}",
      f"s_add_u32 s{S_OST}, s{S_OST}, s{WR}", f"s_lshl_b32 s{S_OST}, s{S_OST}, 10", f"s_add_u32 s{S_OST}, s{S_OST}, {WS_OF}",
      f"s_lshl_b32 s{S_OFL}, s{G}, 9", f"s_lshl_b32 s{T1}, s{J}, 4", f"s_add_u32 s{S_OFL}, s{S_OFL}, s{T1}",
      f"s_lshl_b32 s{T1}, s{WR}, 2", f"s_add_u32 s{S_OFL}, s{S_OFL}, s{T1}", f"s_add_u32 s{S_OFL}, s{S_OFL}, {WS_FLAG + 256}")
    def oflag(p):
        A(f"s_add_u32 s{T0}, s{S_OFL}, {128*p}")
        flag_store(A, T0, VT0, VT1)
    def store_o(src8):
        for i in range(4):
            A(f"v_cvt_pk_bf16_f32 {v(CT+i)}, {v(src8+2*i)}, {v(src8+2*i+1)}")
        A(f"s_lshl_b32 s{T0}, s{PASS}, 15", f"s_add_u32 s{T0}, s{T0}, s{S_OST}",
          f"buffer_store_dwordx4 {v(CT,4)}, {v(VL16)}, s[{SWS}:{SWS+3}], s{T0} offen sc1")
    def by_pass(f0, f1):
        L0, L1 = A.newlabel("bp0"), A.newlabel("bp1")
        A(f"s_cmp_eq_u32 s{PASS}, 0", f"s_cbranch_scc0 {L0}")
        f0()
        A(f"s_branch {L1}")
        A.label(L0)
        f1()
        A.label(L1)
    def before_part_writes():
        by_pass(lambda: lds_wait(A, F_QR, 4, VT0, VT1, FAIL), lambda: lds_wait(A, F_A0R, 4, VT0, VT1, FAIL))
    def part_sync():
        def f(flag):
            lds_signal(A, flag, VT0, VT1)
            lds_wait(A, flag, 4, VT0, VT1, FAIL)
        by_pass(lambda: f(F_A0), lambda: f(F_A1))

    kv_reset()
    for st in range(3):
        A(*kvload_list(st))
    A(f"s_mov_b32 s{PASS}, 0")
    for i in range(8):
        A(f"v_mov_b32 {v(VR+24+i)}, 0")
    L_pass = A.newlabel("pass")
    A.label(L_pass)
    for i in range(8):
        A(f"v_mov_b32 {v(SB_+8+i)}, 0")
    for i in range(0, 64, 2):
        A(f"v_pk_mul_f32 {v(O+i,2)}, {v(SB_+8,2)}, {v(SB_+8,2)}")
    L_p1w = A.newlabel("p1w")
    A("s_waitcnt vmcnt(7)", f"s_cmp_eq_u32 s{PASS}, 0", f"s_cbranch_scc0 {L_p1w}", "s_waitcnt vmcnt(6)")
    A.label(L_p1w)
    A(f"v_mfma_f32_32x32x16_bf16 {v(SA,16)}, {v(KR,4)}, {v(Q0,4)}, 0", "s_nop 11", f"s_mov_b32 s{CNT}, 4")
    L_loop = A.newlabel("aloop")
    A.label(L_loop)
    for n in range(16):
        kt, qi = n // 4, n % 4
        cur, oth = S_[n % 2], S_[(n+1) % 2]
        pk, pq = ((n-1) % 16) // 4, (n-1) % 4
        nk, nq = ((n+1) % 16) // 4, (n+1) % 4
        side = {}
        if qi == 0:
            kl = kvload_list((kt+3) % 4)
            side[1] = kl[:3]
            for i, ins in enumerate(kl[3:]):
                side[2+i] = [ins]
        if qi == 3:
            side[6] = [] if os.environ.get("NOKVWAIT") else ["s_waitcnt vmcnt(6)"]
        if n == 15:
            side[12] = [f"s_sub_u32 s{CNT}, s{CNT}, 1"]
            side[13] = [f"s_cmp_lg_u32 s{CNT}, 0"]
        for i in range(16):
            A(f"v_exp_f32 {v(cur+i)}, {v(cur+i)}")
            if i == 1:
                A(f"v_smfmac_f32_32x32x32_bf16 {v(O+16*pq,16)}, {v(VR+8*pk+4,4)}, {v(oth+8,8)}, {v(VIDX)}")
            A(*side.get(i, []))
            if i == 6:
                A(f"v_mfma_f32_32x32x16_bf16 {v(oth,16)}, {v(KR+4*nk,4)}, {v(Q0+4*nq,4)}, 0")
            if i == 11:
                A(f"v_smfmac_f32_32x32x32_bf16 {v(O+16*qi,16)}, {v(VR+8*kt,4)}, {v(cur,8)}, {v(VIDX)}")
    if TRACE:
        A(f"s_cselect_b32 s101, 1, 0")
        trace(A, VT0, VT1)
        A(f"s_cmp_eq_u32 s101, 1")
    A(f"s_cbranch_scc0 {L_loop}_out")
    A(f"s_cmp_eq_u32 s{CNT}, 3", f"s_cbranch_scc0 {L_loop}", f"s_cmp_eq_u32 s{PASS}, 1", f"s_cbranch_scc0 {L_loop}")
    oflag(0)
    A(f"s_branch {L_loop}")
    A.label(L_loop + "_out")
    A("s_nop 0", f"v_smfmac_f32_32x32x32_bf16 {v(O+48,16)}, {v(VR+8*3+4,4)}, {v(SB_+8,8)}, {v(VIDX)}")
    before_part_writes()
    for qi in range(3):
        A(f"ds_write_b128 {v(VPW)}, {v(O+16*qi,4)} offset:{qi*2304}",
          f"ds_write_b128 {v(VPW)}, {v(O+16*qi+4,4)} offset:{qi*2304+1024}",
          f"ds_write_b32 {v(VPW2)}, {v(O+16*qi+8)} offset:{qi*2304+2048}")
    A("s_nop 3",
      f"ds_write_b128 {v(VPW)}, {v(O+48,4)} offset:{3*2304}",
      f"ds_write_b128 {v(VPW)}, {v(O+48+4,4)} offset:{3*2304+1024}",
      f"ds_write_b32 {v(VPW2)}, {v(O+48+8)} offset:{3*2304+2048}")
    part_sync()
    for x in range(4):
        A(f"ds_read_b128 {v(O+16*x,4)}, {v(VPR)} offset:{x*PART_W}",
          f"ds_read_b128 {v(O+16*x+4,4)}, {v(VPR)} offset:{x*PART_W+1024}",
          f"ds_read_b32 {v(O+16*x+8)}, {v(VPR2)} offset:{x*PART_W+2048}")
    for x in range(1, 4):
        A(f"s_waitcnt lgkmcnt({3*(3-x)})")
        for i in range(0, 8, 2):
            A(f"v_pk_add_f32 {v(O+i,2)}, {v(O+i,2)}, {v(O+16*x+i,2)}")
        A(f"v_add_f32 {v(O+8)}, {v(O+8)}, {v(O+16*x+8)}")
    A(f"v_rcp_f32 {v(O+8)}, {v(O+8)}", "s_nop 0")
    for i in range(0, 8, 2):
        A(f"v_pk_mul_f32 {v(O+i,2)}, {v(O+i,2)}, {v(O+8,2)} op_sel_hi:[1,0]")
    store_o(O)
    L_fin = A.newlabel("afin")
    A(f"s_cmp_eq_u32 s{PASS}, 1", f"s_cbranch_scc1 {L_fin}")
    lds_signal(A, F_A0R, VT0, VT1)
    trace(A, VT0, VT1)
    for i in range(16):
        A(f"v_mov_b32 {v(Q0+i)}, {v(Q1+i)}")
    A(f"s_mov_b32 s{PASS}, 1", f"s_branch {L_pass}")
    A.label(L_fin)
    trace(A, VT0, VT1)
    A("s_waitcnt vmcnt(0)")
    oflag(1)
    trace(A, VT0, VT1)
    A(f"s_branch {END}")

    A.label(L_slow)
    M = CT+8
    A(f"s_mov_b32 s{PASS}, 0", "s_mov_b32 s96, 0", "s_mov_b32 s97, -1")
    Lsp = A.newlabel("spass")
    A.label(Lsp)
    before_part_writes()
    for qi in range(4):
        A(f"v_mov_b32 {v(M)}, 0xff800000")
        kv_reset()
        L1 = A.newlabel("smax")
        A.label(L1)
        A(kvload_list(0)[0], "s_waitcnt vmcnt(0)",
          f"v_mfma_f32_32x32x16_bf16 {v(SA,16)}, {v(KR,4)}, {v(Q0+4*qi,4)}, 0", "s_nop 15")
        for i in range(0, 16, 2):
            A(f"v_max3_f32 {v(M)}, {v(SA+i)}, {v(SA+i+1)}, {v(M)}")
        A(*kvload_list(0)[3:], f"s_cmp_lg_u32 s{KVO}, 0", f"s_cbranch_scc1 {L1}")
        swap_reduce(A, "v_max_f32", M, VT0, 32)
        for i in range(16):
            A(f"v_mov_b32 {v(O+i)}, 0")
        kv_reset()
        L2 = A.newlabel("spv")
        A.label(L2)
        A(*kvload_list(0)[:3], "s_waitcnt vmcnt(0)",
          f"v_mfma_f32_32x32x16_bf16 {v(SA,16)}, {v(KR,4)}, {v(Q0+4*qi,4)}, 0", "s_nop 15")
        for i in range(16):
            A(f"v_sub_f32 {v(SA+i)}, {v(SA+i)}, {v(M)}")
        for i in range(16):
            A(f"v_exp_f32 {v(SA+i)}, {v(SA+i)}")
        A("s_nop 1",
          f"v_smfmac_f32_32x32x32_bf16 {v(O,16)}, {v(VR,4)}, {v(SA,8)}, {v(VIDX)}",
          f"v_smfmac_f32_32x32x32_bf16 {v(O,16)}, {v(VR+4,4)}, {v(SA+8,8)}, {v(VIDX)}", "s_nop 15",
          *kvload_list(0)[3:], f"s_cmp_lg_u32 s{KVO}, 0", f"s_cbranch_scc1 {L2}")
        A(f"v_cndmask_b32 {v(O+9)}, {v(O+8)}, {v(M)}, s[96:97]",
          f"ds_write_b128 {v(VPW)}, {v(O,4)} offset:{qi*2304}",
          f"ds_write_b128 {v(VPW)}, {v(O+4,4)} offset:{qi*2304+1024}",
          f"ds_write_b32 {v(VPW2)}, {v(O+9)} offset:{qi*2304+2048}")
    part_sync()
    A(f"s_mul_i32 s{T1}, s{WR}, 2304", f"s_add_u32 s{T1}, s{T1}, {L_A}",
      f"v_and_b32 {v(VT2)}, 31, {v(LANE)}", f"v_lshlrev_b32 {v(VT2)}, 2, {v(VT2)}", f"v_add_u32 {v(VT2)}, s{T1}, {v(VT2)}")
    for x in range(4):
        A(f"ds_read_b128 {v(O+16*x,4)}, {v(VPR)} offset:{x*PART_W}",
          f"ds_read_b128 {v(O+16*x+4,4)}, {v(VPR)} offset:{x*PART_W+1024}",
          f"ds_read_b32 {v(O+16*x+8)}, {v(VT2)} offset:{x*PART_W+2048}",
          f"ds_read_b32 {v(O+16*x+9)}, {v(VT2)} offset:{x*PART_W+2048+128}")
    A("s_waitcnt lgkmcnt(0)",
      f"v_max3_f32 {v(M)}, {v(O+9)}, {v(O+16+9)}, {v(O+32+9)}", f"v_max_f32 {v(M)}, {v(M)}, {v(O+48+9)}")
    for x in range(4):
        A(f"v_sub_f32 {v(O+16*x+9)}, {v(O+16*x+9)}, {v(M)}", f"v_exp_f32 {v(O+16*x+9)}, {v(O+16*x+9)}", "s_nop 0")
        for i in range(9):
            A(f"v_mul_f32 {v(O+16*x+i)}, {v(O+16*x+i)}, {v(O+16*x+9)}")
    for x in range(1, 4):
        for i in range(9):
            A(f"v_add_f32 {v(O+i)}, {v(O+i)}, {v(O+16*x+i)}")
    A(f"v_rcp_f32 {v(O+8)}, {v(O+8)}", "s_nop 0")
    for i in range(8):
        A(f"v_mul_f32 {v(O+i)}, {v(O+i)}, {v(O+8)}")
    store_o(O)
    A("s_waitcnt vmcnt(0)")
    Ls1 = A.newlabel("s1")
    A(f"s_cmp_eq_u32 s{PASS}, 1", f"s_cbranch_scc1 {Ls1}")
    oflag(0)
    lds_signal(A, F_A0R, VT0, VT1)
    for i in range(16):
        A(f"v_mov_b32 {v(Q0+i)}, {v(Q1+i)}")
    A(f"s_mov_b32 s{PASS}, 1", f"s_branch {Lsp}")
    A.label(Ls1)
    oflag(1)
    A(f"s_branch {END}")

def gen_role_g(A, END):
    FAIL = END
    VL16, VT0, VT1, VT2, VX = 2, 9, 10, 11, 12
    SLOG = 44
    WH, WL = 47, 96
    SK, SB0, SB1 = 97, 98, 99
    ACC = 128
    hi = lambda: A(f"s_setprio {GPRIO_HI}")
    lo = lambda: A(f"s_setprio {GPRIO_LOOP}")
    A(f"v_lshlrev_b32 {v(VL16)}, 4, {v(LANE)}", f"s_mov_b32 s{SLOG}, {f32bits(-LOG2E):#x}",
      f"s_lshr_b32 s{WH}, s{WR}, 1", f"s_and_b32 s{WL}, s{WR}, 1")
    L_kv, L_g2 = A.newlabel("kvunit"), A.newlabel("gemm2")
    A(f"s_cmp_eq_u32 s{J}, 7", f"s_cbranch_scc1 {L_kv}")
    lo()
    def hflag():
        A(f"s_lshl_b32 s{T0}, s{G}, 9", f"s_lshl_b32 s{T1}, s{J}, 4", f"s_add_u32 s{T0}, s{T0}, s{T1}",
          f"s_lshl_b32 s{T1}, s{WR}, 2", f"s_add_u32 s{T0}, s{T0}, s{T1}", f"s_add_u32 s{T0}, s{T0}, {WS_FLAG + 128}")
        flag_store(A, T0, VT0, VT1)
    if os.environ.get("SKIP_G1"):
        lds_signal(A, F_G1, VT0, VT1)
        lds_wait(A, F_NONCE, 1, VT0, VT1, FAIL, dst=NONCE)
        hflag()
        A(f"s_branch {L_g2}")
    VAB0, VAB1, VB0, VB1 = G_AB0, G_AB1, G_B0, G_B1
    q = VmQ(A)
    for hs in range(4):
        q.issue(("h", hs)); q.issue(("h", hs))
    AS, BS = 64, 96
    def areg(set_, mat, un): return AS + 16*set_ + 4*(mat*2+un)
    def breg(set_, tt): return BS + 8*set_ + 4*tt
    def acc(mat, un, tt): return ACC + 16*((mat*2+un)*2+tt)
    def reads(st):
        set_ = st % 2
        L = []
        for mat in range(2):
            slot = (2*st + mat) % 7
            for un in range(2):
                va = VAB0 if un == 0 else VAB1
                r = areg(set_, mat, un)
                L.append(f"ds_read_b64_tr_b16 {v(r,2)}, {v(va)} offset:{slot*2048}")
                L.append(f"ds_read_b64_tr_b16 {v(r+2,2)}, {v(va)} offset:{slot*2048+512}")
        Lb = [f"ds_read_b128 {v(breg(set_,tt),4)}, {v(VB0 if tt==0 else VB1)} offset:{L_XN + st*XL_S}" for tt in range(2)]
        return Lb[:1] + L[:4] + Lb[1:] + L[4:]
    def dma(hs):
        L = []
        if hs >= 64: return L
        sr = SW1 if hs % 2 == 0 else SW2
        for half in range(2):
            L.append([f"s_add_u32 m0, s{RB}, {(hs % 7)*2048 + half*1024}", f"s_mov_b32 s{T1}, {(16*(hs//2) + 8*half)*2*F}",
                      f"buffer_load_dwordx4 {v(VP)}, s[{sr}:{sr+3}], s{T1} offen lds"])
        return L
    q.wait(("h", 1))
    A(*reads(0))
    for hs in range(4, 7):
        for grp in dma(hs):
            A(*grp); q.issue(("h", hs))
    for st in range(32):
        par = st % 2
        mf = []
        for un in range(2):
            for mat in range(2):
                for tt in range(2):
                    c = '0' if st == 0 else v(acc(mat,un,tt),16)
                    mf.append(f"v_mfma_f32_32x32x16_bf16 {v(acc(mat,un,tt),16)}, {v(areg(par,mat,un),4)}, {v(breg(par,tt),4)}, {c}")
        A("s_waitcnt lgkmcnt(0)")
        if st % 8 == 0: trace(A, VT0, VT1)
        d7, d8 = dma(2*st+7), dma(2*st+8)
        side = [[] for _ in range(8)]
        if st + 1 < 32:
            rd = reads(st+1)
            side[1] = [("w", ("h", 2*st+3))] + rd[0:3]
            side[2] = rd[3:6]; side[3] = rd[6:8]; side[4] = rd[8:10]
        k = 0
        for hs, grps in ((2*st+7, d7), (2*st+8, d8)):
            for grp in grps:
                side[(0, 5, 6, 7)[k]] = side[(0, 5, 6, 7)[k]] + [("d", hs, grp)]
                k += 1
        for i in range(8):
            A(mf[i])
            for x in side[i]:
                if isinstance(x, str): A(x)
                elif x[0] == "w": q.wait(x[1])
                else:
                    A(*x[2]); q.issue(("h", x[1]))
    lds_signal(A, F_G1, VT0, VT1)
    trace(A, VT0, VT1)
    lds_wait(A, F_NONCE, 1, VT0, VT1, FAIL, dst=NONCE)
    TT_, RR = 64, 80
    A(f"s_lshl_b32 s{T2}, s{G}, 1", f"s_mul_i32 s{T2}, s{T2}, 112", f"s_lshl_b32 s{T1}, s{J}, 4", f"s_add_u32 s{T2}, s{T2}, s{T1}",
      f"s_lshl_b32 s{T1}, s{WR}, 2", f"s_add_u32 s{T2}, s{T2}, s{T1}", f"s_lshl_b32 s{T2}, s{T2}, 10", f"s_add_u32 s{T2}, s{T2}, {WS_HF}")
    for un in range(2):
        for tt in range(2):
            g_, u_ = acc(0, un, tt), acc(1, un, tt)
            hi()
            silu_gate(A, g_, 16, TT_, SLOG)
            for i in range(0, 16, 2):
                A(f"v_pk_mul_f32 {v(g_+i,2)}, {v(g_+i,2)}, {v(u_+i,2)}")
            pk = RR + 8*((un*2+tt) % 2)
            for i in range(0, 16, 2):
                A(f"v_pk_mul_f32 {v(g_+i,2)}, {v(g_+i,2)}, {v(TT_+i,2)}")
            for i in range(8):
                A(f"v_cvt_pk_bf16_f32 {v(pk+i)}, {v(g_+2*i)}, {v(g_+2*i+1)}")
            lo()
            A(f"s_add_u32 s{T0}, s{T2}, {(tt*112 + 2*un)*1024}",
              f"buffer_store_dwordx4 {v(pk,4)}, {v(VL16)}, s[{SWS}:{SWS+3}], s{T0} offen sc1",
              f"buffer_store_dwordx4 {v(pk+4,4)}, {v(VL16)}, s[{SWS}:{SWS+3}], s{T0} offen offset:1024 sc1")
    def g2_addresses():
        hi()
        panel_voff(A, VP, VT0, VT1, 2*D)
        A(f"s_lshl_b32 s{T0}, s{J}, 7", f"v_add_u32 {v(VP)}, s{T0}, {v(VP)}")
        tr_base(A, VAB0, f"s{WH}", 4, VT0, VT1)
        A(f"s_xor_b32 s{T0}, s{WH}, 1")
        tr_base(A, VAB1, f"s{T0}", 4, VT0, VT1)
        A(f"v_mov_b32 {v(VB0)}, {v(VAB0)}",
          f"v_add_u32 {v(VAB0)}, s{RB}, {v(VAB0)}", f"v_add_u32 {v(VAB1)}, s{RB}, {v(VAB1)}",
          f"v_min_u32 {v(VT2)}, 6, {v(LANE)}", f"v_lshlrev_b32 {v(VT2)}, 2, {v(VT2)}")
        A(f"s_lshl_b32 s{T0}, s{G}, 1", f"s_add_u32 s{T0}, s{T0}, s{WL}", f"s_lshl_b32 s{T0}, s{T0}, 15",
          f"s_lshl_b32 s{T1}, s{J}, 7", f"s_add_u32 s{T0}, s{T0}, s{T1}", f"s_lshl_b32 s{T1}, s{WH}, 6", f"s_add_u32 s{T0}, s{T0}, s{T1}",
          f"v_and_b32 {v(VX)}, 31, {v(LANE)}", f"v_lshlrev_b32 {v(VX)}, 10, {v(VX)}",
          f"v_lshrrev_b32 {v(VT0)}, 5, {v(LANE)}", f"v_lshlrev_b32 {v(VT0)}, 3, {v(VT0)}", f"v_add_u32 {v(VX)}, {v(VX)}, {v(VT0)}",
          f"v_add_u32 {v(VX)}, s{T0}, {v(VX)}")
        lo()
    g2_addresses()
    A("s_waitcnt vmcnt(0)")
    hflag()
    A(f"s_branch {L_g2}")

    A.label(L_kv)
    hi()
    XB, WB = K_XB, K_WB
    A(f"v_mov_b32 {v(VT0)}, 0", f"buffer_load_dword {v(VX)}, {v(VT0)}, s[{SDBG}:{SDBG+3}], 0 offen sc1")
    KA, VA_, NSK = 40, 44, 3
    KS_, VS_, XS_ = 64, 80, 96
    def woff(m, st):
        a_ = st % 4
        return (st//4)*8192 + ((a_ % 2) + 2*m + 4*(a_//2))*1024
    def kvrd(st):
        k = st % NSK
        A(f"ds_read_b128 {v(XS_+4*k,4)}, {v(XB)} offset:{L_XN + st*2*XL_S}",
          f"ds_read_b64_tr_b16 {v(KS_+4*k,2)}, {v(WB)} offset:{woff(0,st)}",
          f"ds_read_b64_tr_b16 {v(KS_+4*k+2,2)}, {v(WB)} offset:{woff(0,st)+256}",
          f"ds_read_b64_tr_b16 {v(VS_+4*k,2)}, {v(WB)} offset:{woff(1,st)}",
          f"ds_read_b64_tr_b16 {v(VS_+4*k+2,2)}, {v(WB)} offset:{woff(1,st)+256}")
    for st in range(NSK-1):
        kvrd(st)
    for st in range(16):
        if st + NSK - 1 < 16:
            kvrd(st + NSK - 1)
        left = min(NSK - 1, 15 - st)
        k = st % NSK
        A(f"s_waitcnt lgkmcnt({5*left})",
          f"v_mfma_f32_16x16x32_bf16 {v(KA,4)}, {v(KS_+4*k,4)}, {v(XS_+4*k,4)}, {'0' if st==0 else v(KA,4)}",
          f"v_mfma_f32_16x16x32_bf16 {v(VA_,4)}, {v(XS_+4*k,4)}, {v(VS_+4*k,4)}, {'0' if st==0 else v(VA_,4)}")
    PK, ON = 48, 52
    A(f"v_mov_b32 {v(VT1)}, 0x3f803f80", f"v_cmp_eq_u32 vcc, 0, {v(LANE)}", f"v_lshlrev_b32 {v(VT0)}, 4, {v(LANE)}",
      f"v_add_u32 {v(VT0)}, 512, {v(VT0)}", f"v_cndmask_b32 {v(ON)}, 0, {v(VT1)}, vcc")
    A(f"v_mov_b32 {v(ON+1)}, {v(ON)}", f"v_mov_b32 {v(ON+2)}, {v(ON)}", f"v_mov_b32 {v(ON+3)}, {v(ON)}", "s_nop 1")
    A(f"v_cvt_pk_bf16_f32 {v(PK)}, {v(KA)}, {v(KA+1)}", f"v_cvt_pk_bf16_f32 {v(PK+1)}, {v(KA+2)}, {v(KA+3)}",
      f"v_cvt_pk_bf16_f32 {v(PK+2)}, {v(VA_)}, {v(VA_+1)}", f"v_cvt_pk_bf16_f32 {v(PK+3)}, {v(VA_+2)}, {v(VA_+3)}",
      f"buffer_store_dwordx2 {v(PK,2)}, {v(K_KS)}, s[{SWS}:{SWS+3}], s{S_KST} offen sc1",
      f"buffer_store_dwordx2 {v(PK+2,2)}, {v(K_VS)}, s[{SWS}:{SWS+3}], s{S_VST} offen sc1",
      "s_mov_b64 exec, 3",
      f"buffer_store_dwordx4 {v(ON,4)}, {v(VT0)}, s[{SWS}:{SWS+3}], s{S_VST} offen sc1", "s_mov_b64 exec, -1")
    lds_signal(A, F_G1, VT0, VT1)
    N0, N1 = 57, 58
    A(f"v_mul_f32 {v(N0)}, {v(KA)}, {v(KA)}")
    for i in range(1, 4):
        A(f"v_fma_f32 {v(N0)}, {v(KA+i)}, {v(KA+i)}, {v(N0)}")
    A(f"v_max_f32 {v(N1)}, |{v(VA_)}|, |{v(VA_+1)}|", f"v_max3_f32 {v(N1)}, |{v(VA_+2)}|, |{v(VA_+3)}|, {v(N1)}")
    swap_reduce(A, "v_add_f32", N0, VT0, 16)
    swap_reduce(A, "v_add_f32", N0, VT0, 32)
    for st_ in ROW16:
        A(f"v_max_f32_dpp {v(N0)}, {v(N0)}, {v(N0)} {st_} row_mask:0xf bank_mask:0xf", "s_nop 0",
          f"v_max_f32_dpp {v(N1)}, {v(N1)}, {v(N1)} {st_} row_mask:0xf bank_mask:0xf", "s_nop 0")
    swap_reduce(A, "v_max_f32", N1, VT0, 16)
    swap_reduce(A, "v_max_f32", N1, VT0, 32)
    A(f"s_lshl_b32 s{T4}, s{G}, 9", f"s_lshl_b32 s{T1}, s{WR}, 4", f"s_add_u32 s{T4}, s{T4}, s{T1}", f"s_add_u32 s{T4}, s{T4}, {WS_FLAG}",
      "v_mov_b32 v59, 0", "s_waitcnt vmcnt(0)", f"v_readfirstlane_b32 s{NONCE}, {v(VX)}", "s_nop 3")
    L_hn = A.newlabel("hn")
    A(f"s_cmp_lg_u32 s{NONCE}, 0", f"s_cbranch_scc1 {L_hn}")
    nonce_fetch(A, VT0, VT1, FAIL)
    A.label(L_hn)
    A(f"v_mov_b32 v56, s{NONCE}", f"v_mov_b32 {v(VT0)}, 0", "s_mov_b64 exec, 1",
      f"buffer_store_dwordx4 v[56:59], {v(VT0)}, s[{SWS}:{SWS+3}], s{T4} offen sc1", "s_mov_b64 exec, -1")
    lo()
    trace(A, VT0, VT1)
    VAB0, VAB1, VB0 = G_AB0, G_AB1, G_B0
    g2_addresses()
    A.label(L_g2)
    trace(A, VT0, VT1)
    if os.environ.get("SKIP_G2"):
        A(f"s_branch {END}")
    DP = 7
    A2, B2 = 192, 64
    srd(A, SW3, P_WD, D*F*2)
    srd(A, SW1, P_WO, D*D*2)
    A(f"s_mul_i32 s{SK}, s{WR}, {28*16*2*D}",
      f"s_lshl_b32 s{T0}, s{G}, 1", f"s_add_u32 s{T0}, s{T0}, s{WL}", f"s_mul_i32 s{SB0}, s{T0}, {112*1024}",
      f"s_xor_b32 s{T0}, s{T0}, 1", f"s_mul_i32 s{SB1}, s{T0}, {112*1024}",
      f"s_mul_i32 s{T0}, s{WR}, {28*1024}", f"s_add_u32 s{T0}, s{T0}, {WS_HF}",
      f"s_add_u32 s{SB0}, s{SB0}, s{T0}", f"s_add_u32 s{SB1}, s{SB1}, s{T0}")
    def areads(st):
        k = st % DP
        L = []
        for aa, va in ((0, VAB0), (1, VAB1)):
            r = A2 + 8*k + 4*aa
            L.append(f"ds_read_b64_tr_b16 {v(r,2)}, {v(va)} offset:{k*2048}")
            L.append(f"ds_read_b64_tr_b16 {v(r+2,2)}, {v(va)} offset:{k*2048+1024}")
        return L
    def wdma(st, half):
        return [f"s_add_u32 m0, s{RB}, {(st % DP)*2048 + half*1024}", f"s_add_u32 s{T0}, s{SK}, {(st*16 + half*8)*2*D}",
                f"buffer_load_dwordx4 {v(VP)}, s[{SW3}:{SW3+3}], s{T0} offen lds"]
    def bload(st, b):
        sb = (SB0, SB1)[b]
        return [f"s_add_u32 s{T0}, s{sb}, {(st//4)*4096}",
                f"buffer_load_dwordx4 {v(B2+8*(st % DP)+4*b,4)}, {v(VL16)}, s[{SWS}:{SWS+3}], s{T0} offen offset:{(st%4)*1024} sc1"]
    lds_wait(A, F_G1, 4, VT0, VT1, FAIL, sleep=1)
    for st in range(DP):
        for half in range(2):
            A(*wdma(st, half))
    lds_wait(A, F_Q3, 4, VT0, VT1, FAIL, sleep=1)
    A(f"s_lshl_b32 s{T0}, s{WR}, 17", f"s_lshl_b32 s{T2}, s{WR}, 14")
    for i in range(16):
        A(f"s_add_u32 m0, s{T2}, {L_XN + i*1024}", f"s_add_u32 s{T1}, s{T0}, {i*8192}",
          f"buffer_load_dwordx4 {v(VP)}, s[{SW1}:{SW1+3}], s{T1} offen lds")
    trace(A, VT0, VT1)
    lds_wait(A, F_NONCE, 1, VT0, VT1, FAIL, dst=NONCE, sleep=1)
    A(f"s_lshl_b32 s{T2}, s{G}, 9", f"s_mul_i32 s{T1}, s{WR}, 28", f"s_add_u32 s{T2}, s{T2}, s{T1}",
      f"s_add_u32 s{T2}, s{T2}, {WS_FLAG + 128}")
    flag_poll(A, T2, VT2, VT1, FAIL)
    lds_signal(A, F_WO, VT0, VT1)
    trace(A, VT0, VT1)
    q = VmQ(A)
    for st in range(DP-1):
        for b in range(2):
            A(*bload(st, b)); q.issue(("b", st))
    A(*areads(0))
    for st in range(28):
        k = st % DP
        ar = lambda aa: v(A2 + 8*k + 4*aa, 4)
        br = lambda b: v(B2 + 8*k + 4*b, 4)
        ac = lambda aa, b: v(ACC + 16*(2*aa+b), 16)
        mf = [f"v_mfma_f32_32x32x16_bf16 {ac(aa,b)}, {ar(aa)}, {br(b)}, {'0' if st==0 else ac(aa,b)}" for aa in range(2) for b in range(2)]
        n = q.count(("b", st))
        if st + 1 >= DP and st + 1 < 28:
            n = min(n, q.count(("w", st+1)))
        A(f"s_waitcnt vmcnt({n}) lgkmcnt(0)")
        nb = st - 1 + DP
        rd = areads(st+1) if st + 1 < 28 else []
        A(mf[0], *rd[:2])
        if nb < 28:
            A(*bload(nb, 0)); q.issue(("b", nb))
        A(mf[1], *rd[2:])
        if nb < 28:
            A(*bload(nb, 1)); q.issue(("b", nb))
        A(mf[2])
        if st + DP < 28:
            A(*wdma(st + DP, 0)); q.issue(("w", st+DP))
        A(mf[3])
        if st + DP < 28:
            A(*wdma(st + DP, 1)); q.issue(("w", st+DP))
    trace(A, VT0, VT1)
    XR = 160
    hi()
    A(f"v_add_u32 {v(VT2)}, s{RB}, {v(VL16)}", "s_nop 7")
    for z in range(1, 4):
        for qq in range(4):
            A(f"ds_write_b128 {v(VT2)}, {v(ACC+16*z+4*qq,4)} offset:{(z-1)*4096 + qq*1024}")
    lds_signal(A, F_RED, VT0, VT1)
    A("s_waitcnt lgkmcnt(0)")
    lo()
    for i in range(4):
        A(f"buffer_load_dwordx2 {v(XR+2*i,2)}, {v(VX)}, s[{SX}:{SX+3}], 0 offen offset:{i*16}")
    lds_wait(A, F_RED, 4, VT0, VT1, FAIL)
    hi()
    for z in range(1, 4):
        A(f"s_xor_b32 s{T0}, s{WR}, {z}", f"s_mul_i32 s{T0}, s{T0}, {RING}", f"s_add_u32 s{T0}, s{T0}, {L_RING + (z-1)*4096}",
          f"v_add_u32 {v(VT2)}, s{T0}, {v(VL16)}")
        for qq in range(4):
            A(f"ds_read_b128 {v(64+16*(z-1)+4*qq,4)}, {v(VT2)} offset:{qq*1024}")
    for z in range(1, 4):
        A(f"s_waitcnt lgkmcnt({4*(3-z)})")
        for i in range(0, 16, 2):
            A(f"v_pk_add_f32 {v(ACC+i,2)}, {v(ACC+i,2)}, {v(64+16*(z-1)+i,2)}")
    silu_gate(A, ACC, 16, 64, SLOG)
    for i in range(0, 16, 2):
        A(f"v_pk_mul_f32 {v(ACC+i,2)}, {v(ACC+i,2)}, {v(64+i,2)}")
    A(f"v_and_b32 {v(VT2)}, 31, {v(LANE)}", f"v_lshlrev_b32 {v(VT2)}, 2, {v(VT2)}")
    lo()
    trace(A, VT0, VT1)
    srd(A, SOUT, P_OUT, S*D*2)
    lds_wait(A, F_WO, 4, VT0, VT1, FAIL, sleep=1)
    A(f"s_lshl_b32 s{T2}, s{G}, 9", f"s_lshl_b32 s{T1}, s{WL}, 7", f"s_add_u32 s{T2}, s{T2}, s{T1}",
      f"s_add_u32 s{T2}, s{T2}, {WS_FLAG + 256}")
    flag_poll(A, T2, VT2, VT1, FAIL, sleep=env("OPOLL_SLEEP", 1))
    trace(A, VT0, VT1)
    def ofr(st): return (64 + 4*st) if st < 16 else (192 + 4*(st-16))
    A(f"s_lshl_b32 s{T0}, s{G}, 1", f"s_add_u32 s{T0}, s{T0}, s{WL}", f"s_lshl_b32 s{T1}, s{T0}, 15", f"s_add_u32 s{T1}, s{T1}, {WS_OF}")
    for st in range(32):
        if st % 4 == 0 and st:
            A(f"s_add_u32 s{T1}, s{T1}, 4096")
        A(f"buffer_load_dwordx4 {v(ofr(st),4)}, {v(VL16)}, s[{SWS}:{SWS+3}], s{T1} offen offset:{(st%4)*1024} sc1")
    SACC, AS3, NS = 144, 168, 4
    def rd(st):
        k = st % NS
        A(f"ds_read_b64_tr_b16 {v(AS3+4*k,2)}, {v(VB0)} offset:{L_XN + st*2048}",
          f"ds_read_b64_tr_b16 {v(AS3+4*k+2,2)}, {v(VB0)} offset:{L_XN + st*2048+1024}")
    for st in range(NS-1):
        rd(st)
    for st in range(32):
        if st + NS - 1 < 32:
            rd(st + NS - 1)
        left = min(NS-1, 31-st)
        k = st % NS
        A(f"s_waitcnt vmcnt({31 - st}) lgkmcnt({2*left})",
          f"v_mfma_f32_32x32x16_bf16 {v(SACC,16)}, {v(AS3+4*k,4)}, {v(ofr(st),4)}, {'0' if st==0 else v(SACC,16)}")
    hi()
    A("s_mov_b32 s47, 0xffff0000")
    XF = 64
    for i in range(8):
        A(f"v_lshlrev_b32 {v(XF+2*i)}, 16, {v(XR+i)}", f"v_and_b32 {v(XF+2*i+1)}, s47, {v(XR+i)}")
    for i in range(0, 16, 2):
        A(f"v_pk_fma_f32 {v(XF+i,2)}, {v(SACC+i,2)}, {v(ACC+i,2)}, {v(XF+i,2)}")
    for i in range(8):
        A(f"v_cvt_pk_bf16_f32 {v(XR+i)}, {v(XF+2*i)}, {v(XF+2*i+1)}")
    for i in range(4):
        A(f"buffer_store_dwordx2 {v(XR+2*i,2)}, {v(VX)}, s[{SOUT}:{SOUT+3}], 0 offen offset:{i*16}")
    trace(A, VT0, VT1)
    A(f"s_branch {END}")


def gen_mega(A, name):
    A.raw(f".globl {name}\n.p2align 8\n.type {name},@function\n{name}:")
    END = f"{name}_end"
    A("s_cmp_ge_u32 s2, 256", f"s_cbranch_scc1 {END}")
    gen_phase0(A, END)
    L_g = A.newlabel("roleg")
    A(f"s_cmp_ge_u32 s{W}, 4", f"s_cbranch_scc1 {L_g}")
    gen_role_a(A, END)
    A.label(L_g)
    gen_role_g(A, END)
    A.label(END)
    A("s_endpgm")
    return dict(name=name, vgpr=256, sgpr=102, accum=256, lds=LDS_TOTAL, block=512, grid=256)
```

```python
import sys, os
sys.path.insert(0, os.path.dirname(os.path.abspath(__file__)))
from asmlib import *
from layout import *
import k1

HEADER = open(os.path.join(os.path.dirname(os.path.abspath(__file__)), "header.txt")).read()

def build(kernels, launches):
    A = Asm()
    infos = {}
    for fn in kernels:
        info = fn(A)
        infos[info["name"]] = info
    out = HEADER
    for n in launches:
        i = infos[n]
        out += f"; @launch kernel={n} grid=({i['grid']},1,1) block=({i['block']},1,1) lds={i['lds']}\n"
    out += '.amdgcn_target "amdgcn-amd-amdhsa--gfx950"\n.text\n'
    out += A.text()
    out += '.section .rodata,"a"\n'
    for n, i in infos.items():
        out += kernel_desc(n, i["vgpr"], i["sgpr"], i["accum"])
    return out, infos

if __name__ == "__main__" and os.environ.get("MEGA", "1") == "1":
    import mega
    KN = "recurrent_scan__grouped_kv_mqa__swiglu_ffn__prompt_kernel"
    A = Asm()
    info = mega.gen_mega(A, KN)
    out = HEADER + f"; @launch grid=({info['grid']},1,1) block=({info['block']},1,1) lds={info['lds']}\n"
    out += '.amdgcn_target "amdgcn-amd-amdhsa--gfx950"\n.text\n' + A.text() + '.section .rodata,"a"\n'
    out += kernel_desc(KN, info["vgpr"], info["sgpr"], info["accum"])
    dst = sys.argv[1] if len(sys.argv) > 1 else "out.s"
    open(dst, "w").write(out)
    print("wrote", dst, len(out), "bytes")
elif __name__ == "__main__":
    ks = [k1.gen_k1]
    names = ["k1_kernel"]
    try:
        import k2
        ks.append(k2.gen_k2); names.append("k2_kernel")
        if os.path.exists(os.path.join(os.path.dirname(os.path.abspath(__file__)), "k3.py")):
            import k3
            ks.append(k3.gen_k3); names.append("k3_kernel")
    except ImportError as e:
        print("partial build:", e)
    txt, infos = build(ks, names)
    dst = sys.argv[1] if len(sys.argv) > 1 else "out.s"
    open(dst, "w").write(txt)
    print("wrote", dst, len(txt), "bytes", {k: (i["lds"], i["vgpr"]) for k, i in infos.items()})
```
